```python
import torch

def _softmax(x, axis=-1):
    return torch.softmax(x, dim=axis)
def _gelu(x):
    return torch.nn.functional.gelu(x, approximate="tanh")
def _silu(x):
    return torch.nn.functional.silu(x)
def _sigmoid(x):
    return torch.sigmoid(x)
def _layernorm(x, axis=-1, eps=1e-5):
    m = x.mean(dim=axis, keepdim=True)
    v = x.var(dim=axis, keepdim=True, unbiased=False)
    return (x - m) / torch.sqrt(v + eps)
def _scatter_add(tgt, idx, src, axis=0):
    return tgt.clone().index_add_(axis, idx, src)
def _segment_sum(src, seg, n):
    out = torch.zeros((n,) + src.shape[1:], dtype=src.dtype)
    return out.index_add_(0, seg, src)
def _pad(x, pw):
    flat = tuple(v for pair in reversed(pw) for v in pair)
    return torch.nn.functional.pad(x, flat)

kernel_name = 'gated_mix__mha_block__ssm_conv_s5__prompt'

def setup_inputs():

    _w = (lambda a: (lambda t: t.to(torch.bfloat16) if t.is_floating_point() else t)(torch.as_tensor(a)))
    def _A_setup():
        B, S, D, H = 1, 2048, 512, 32
        return {
            "x": _w((lambda *s: torch.randn(*s, dtype=torch.bfloat16) * 0.05)(B, S, D)),
            "wqkv": _w((lambda *s: torch.randn(*s, dtype=torch.bfloat16) * 0.8)(D, 3 * D)),
            "wo": _w((lambda *s: torch.randn(*s, dtype=torch.bfloat16) * 0.05)(D, D)),
        }
    _A_in = _A_setup()

    def _B_setup():
        B, S, D = 1, 2048, 512
        P = D
        Lambda_re = -0.5 * (lambda _x: torch.exp(torch.as_tensor(_x)))((lambda *s: torch.randn(*s, dtype=torch.bfloat16) * 0.4)(P))
        Lambda_im = (lambda *s: torch.randn(*s, dtype=torch.bfloat16) * 0.8)(P) * 1.0
        B_re = (lambda *s: torch.randn(*s, dtype=torch.bfloat16) * 0.8)(P, D) * (D ** -0.5)
        B_im = (lambda *s: torch.randn(*s, dtype=torch.bfloat16) * 0.8)(P, D) * (D ** -0.5)
        C_re = (lambda *s: torch.randn(*s, dtype=torch.bfloat16) * 0.8)(D, P) * (P ** -0.5)
        C_im = (lambda *s: torch.randn(*s, dtype=torch.bfloat16) * 0.8)(D, P) * (P ** -0.5)
        log_dt = (lambda *s: torch.randn(*s, dtype=torch.bfloat16) * 0.4)(P) * 0.3 - 2.0
        Dskip = (lambda *s: torch.randn(*s, dtype=torch.bfloat16) * 0.1)(D)
        return {
            "x": _w((lambda *s: torch.randn(*s, dtype=torch.bfloat16) * 0.05)(B, S, D)),
            "Lambda_re": _w(Lambda_re),
            "Lambda_im": _w(Lambda_im),
            "B_re": _w(B_re),
            "B_im": _w(B_im),
            "C_re": _w(C_re),
            "C_im": _w(C_im),
            "log_dt": _w(log_dt),
            "Dskip": _w(Dskip),
        }
    _B_in = _B_setup()

    return {
        "A_x": _A_in["x"],
        "A_wqkv": _A_in["wqkv"],
        "A_wo": _A_in["wo"],
        "B_x": _B_in["x"],
        "B_Lambda_re": _B_in["Lambda_re"],
        "B_Lambda_im": _B_in["Lambda_im"],
        "B_B_re": _B_in["B_re"],
        "B_B_im": _B_in["B_im"],
        "B_C_re": _B_in["C_re"],
        "B_C_im": _B_in["C_im"],
        "B_log_dt": _B_in["log_dt"],
        "B_Dskip": _B_in["Dskip"],
        "gate_w": _w((lambda *s: torch.randn(*s, dtype=torch.bfloat16) * 0.05)(512) * 16.0),
    }

def reference(A_x, A_wqkv, A_wo, B_x, B_Lambda_re, B_Lambda_im, B_B_re, B_B_im, B_C_re, B_C_im, B_log_dt, B_Dskip, gate_w):
    def _A_ref(x, wqkv, wo):
        B, S, D = x.shape
        H = 32
        Dh = D // H
        qkv = (lambda x, *d: x.permute(*d))((x @ wqkv).reshape(B, S, 3, H, Dh), 2, 0, 3, 1, 4)
        q, k, v = qkv[0], qkv[1], qkv[2]
        scores = torch.einsum("bhqd,bhkd->bhqk", q, k) * (Dh ** -0.5)
        p = _softmax(scores, axis=-1)
        o = torch.einsum("bhqk,bhkd->bhqd", p, v)
        return (lambda x, *d: x.permute(*d))(o, 0, 2, 1, 3).reshape(B, S, D) @ wo

    def _B_ref(x, Lambda_re, Lambda_im, B_re, B_im, C_re, C_im, log_dt, Dskip):
        Bsz, L, H = x.shape
        Lam = Lambda_re + 1j * Lambda_im
        Bmat = B_re + 1j * B_im
        Cmat = C_re + 1j * C_im
        dt = torch.exp(log_dt)
        Lam_bar = torch.exp(dt * Lam)
        B_bar = ((Lam_bar - 1.0) / Lam)[:, None] * Bmat
        Bu = torch.einsum("bld,pd->blp", x + 0j, B_bar)
        h = torch.zeros_like(Bu[:, 0, :])
        hs = []
        for t in range(L):
            h = Lam_bar[None, :] * h + Bu[:, t, :]
            hs.append(h)
        hseq = torch.stack(hs, 1)
        y = 2.0 * torch.einsum("blp,dp->bld", hseq, Cmat).real + x * Dskip[None, None, :]
        return y

    x = A_x
    g = _sigmoid((x * gate_w).sum(-1, keepdims=True))
    a = _A_ref(x, A_wqkv, A_wo)
    b = _B_ref(x, B_Lambda_re, B_Lambda_im, B_B_re, B_B_im, B_C_re, B_C_im, B_log_dt, B_Dskip)
    return g * a + (1 - g) * b
```

```python
class Asm:
    def __init__(self):
        self.lines = []
        self.uid = 0
    def __call__(self, s=""):
        for ln in s.split("\n"):
            ln = ln.strip()
            if not ln: continue
            if ln.endswith(":") or ln.startswith("."):
                self.lines.append(ln)
            else:
                self.lines.append("    " + ln)
    def c(self, s):
        self.lines.append("    ; " + s)
    def label(self, base):
        self.uid += 1
        return f"L_{base}_{self.uid}"
    def text(self):
        return "\n".join(self.lines) + "\n"

def vr(b, n=1):
    return f"v{b}" if n == 1 else f"v[{b}:{b+n-1}]"
def sr(b, n=1):
    return f"s{b}" if n == 1 else f"s[{b}:{b+n-1}]"

class Regs:
    def __init__(self, start, limit, name):
        self.n = start; self.limit = limit; self.name = name; self.hi = start
    def alloc(self, n=1, align=1):
        if n >= 2: align = max(align, 2)
        self.n = (self.n + align - 1) // align * align
        r = self.n; self.n += n
        assert self.n <= self.limit, f"{self.name} overflow"
        self.hi = max(self.hi, self.n)
        return r
    def mark(self): return self.n
    def release(self, m): self.n = m

def kernel_header(name):
    return f""".globl {name}
.p2align 8
.type {name},@function
{name}:
"""
def kernel_desc(name, vgprs, sgprs=96, accum=None):
    v = (vgprs + 7) // 8 * 8
    acc = accum if accum is not None else (v + 3) // 4 * 4
    return f""".amdhsa_kernel {name}
  .amdhsa_next_free_vgpr {v}
  .amdhsa_next_free_sgpr {sgprs}
  .amdhsa_accum_offset {acc}
  .amdhsa_group_segment_fixed_size 0
  .amdhsa_kernarg_size 128
  .amdhsa_user_sgpr_count 2
  .amdhsa_user_sgpr_kernarg_segment_ptr 1
  .amdhsa_system_sgpr_workgroup_id_x 1
  .amdhsa_float_denorm_mode_32 3
.end_amdhsa_kernel
"""
```

```python
from asmlib import *

WS_QF  = 0x000000
WS_KF  = 0x200000
WS_VF  = 0x400000
WS_HL  = 0x600000
WS_CS  = 0xA00000
WS_EP  = 0xA80000
WS_PAR = 0xA90000
WS_G   = 0xA94000
WS_AF  = 0xB00000
LOG2E = 1.4426950408889634
import struct
def f2u(x): return "0x%08x" % struct.unpack("<I", struct.pack("<f", x))[0]

STAGE = 36864
L1_LDS = 4 * STAGE + 2048

def srd(a, s, lo, hi, nbytes):
    a(f"s_mov_b32 s{s}, s{lo}")
    a(f"s_and_b32 s{s+1}, s{hi}, 0xffff")
    a(f"s_mov_b32 s{s+2}, {hex(nbytes)}")
    a(f"s_mov_b32 s{s+3}, 0x20000")

def cmul_sq(a, dr, di, sr_, si, t):
    a(f"v_mul_f32 v{t}, v{si}, v{si}")
    a(f"v_fma_f32 v{dr}, v{sr_}, v{sr_}, -v{t}")
    a(f"v_add_f32 v{t}, v{sr_}, v{sr_}")
    a(f"v_mul_f32 v{di}, v{t}, v{si}")

def k1(a):
    name = "k1_kernel"
    a(kernel_header(name))
    END = "L_k1_end"
    sX, sW, sBR, sBI = 28, 32, 36, 40
    sw8, sxcd, si, sc, sR = 22, 23, 24, 25, 26
    sWS = 20
    sIT, sSLOT, sKX, sKW, sRD, sT0, sT1, sM0X, sM0W = 44, 45, 46, 47, 48, 49, 50, 51, 52
    sDELTA = 53
    a(f"""
    s_cmp_ge_u32 s2, 256
    s_cbranch_scc1 {END}
    s_load_dwordx4 s[4:7], s[0:1], 0
    s_load_dwordx8 s[8:15], s[0:1], 32
    s_load_dwordx2 s[16:17], s[0:1], 80
    s_load_dwordx2 s[18:19], s[0:1], 96
    s_load_dwordx2 s[20:21], s[0:1], 120
    v_lshrrev_b32 v2, 6, v0
    v_and_b32 v1, 63, v0
    s_and_b32 s{sxcd}, s2, 7
    v_readfirstlane_b32 s{sw8}, v2
    s_lshr_b32 s{si}, s2, 3
    s_and_b32 s{sc}, s{si}, 1
    s_lshl_b32 s{sT0}, s{sxcd}, 1
    s_add_u32 s{sc}, s{sc}, s{sT0}
    s_lshr_b32 s{sR}, s{si}, 1
    """)
    V = Regs(3, 256, "k1 vgpr")
    vXo = [V.alloc(), V.alloc()]
    t0, t1, t2, t3 = V.alloc(), V.alloc(), V.alloc(), V.alloc()
    for u in range(2):
        a(f"""
        v_lshrrev_b32 v{t0}, 3, v1
        s_lshl_b32 s{sT0}, s{sw8}, 4
        s_add_u32 s{sT0}, s{sT0}, {8*u}
        v_add_u32 v{t0}, s{sT0}, v{t0}          ; rho
        v_and_b32 v{t1}, 31, v{t0}              ; a
        v_bfe_u32 v{t2}, v{t1}, 2, 1
        v_lshlrev_b32 v{t2}, 4, v{t2}           ; h*16
        v_bfe_u32 v{t3}, v{t1}, 3, 2
        v_lshl_add_u32 v{t2}, v{t3}, 2, v{t2}   ; + j*4
        v_and_b32 v{t3}, 3, v{t1}
        v_add_u32 v{t2}, v{t2}, v{t3}           ; tau(a)
        v_and_b32 v{t3}, 0x60, v{t0}
        v_add_u32 v{t2}, v{t2}, v{t3}           ; + 32*rt
        s_lshl_b32 s{sT0}, s{sR}, 7
        v_add_u32 v{t2}, s{sT0}, v{t2}          ; token
        v_bfe_u32 v{t3}, v{t0}, 1, 3            ; sw
        v_and_b32 v{t1}, 7, v1
        v_xor_b32 v{t3}, v{t3}, v{t1}
        v_lshlrev_b32 v{t3}, 4, v{t3}
        v_lshl_add_u32 v{vXo[u]}, v{t2}, 10, v{t3}
        """)
    vWo = V.alloc()
    a(f"""
    s_and_b32 s{sT1}, s{sw8}, 3
    s_cmp_ge_u32 s{sw8}, 4
    s_cbranch_scc1 L_k1_boff
    v_lshrrev_b32 v{t0}, 2, v1
    s_lshl_b32 s{sT0}, s{sT1}, 4
    v_add_u32 v{t0}, s{sT0}, v{t0}            ; k row
    v_mul_u32_u24 v{t0}, 3072, v{t0}
    v_and_b32 v{t1}, 3, v1
    v_lshl_add_u32 v{t0}, v{t1}, 4, v{t0}
    s_lshl_b32 s{sT0}, s{sc}, 6
    v_add_u32 v{vWo}, s{sT0}, v{t0}
    s_branch L_k1_offdone
L_k1_boff:
    v_lshrrev_b32 v{t0}, 3, v1
    s_lshl_b32 s{sT0}, s{sT1}, 3
    v_add_u32 v{t0}, s{sT0}, v{t0}            ; p_local
    v_bfe_u32 v{t1}, v{t0}, 1, 3
    v_and_b32 v{t2}, 7, v1
    v_xor_b32 v{t1}, v{t1}, v{t2}
    v_lshlrev_b32 v{t1}, 4, v{t1}
    s_lshl_b32 s{sT0}, s{sc}, 5
    v_add_u32 v{t0}, s{sT0}, v{t0}
    v_lshl_add_u32 v{vWo}, v{t0}, 10, v{t1}
L_k1_offdone:
    s_waitcnt lgkmcnt(0)
    """)
    srd(a, sX, 4, 5, 0x200000)
    srd(a, sW, 6, 7, 0x180000)
    srd(a, sBR, 12, 13, 0x80000)
    srd(a, sBI, 14, 15, 0x80000)
    vGx, vGw = V.alloc(4, 2), V.alloc(4, 2)
    vP = V.alloc(3)
    sTG = 54
    a(f"""
    s_lshl_b32 s{sTG}, s{sR}, 7
    s_lshl_b32 s{sT0}, s{sc}, 3
    s_add_u32 s{sTG}, s{sTG}, s{sT0}
    s_add_u32 s{sTG}, s{sTG}, s{sw8}
    s_lshl_b32 s{sT0}, s{sTG}, 10
    v_lshlrev_b32 v{t0}, 4, v1
    v_add_u32 v{t1}, s{sT0}, v{t0}
    global_load_dwordx4 {vr(vGx,4)}, v{t1}, s[4:5]
    global_load_dwordx4 {vr(vGw,4)}, v{t0}, s[18:19]
    v_and_b32 v{t2}, 31, v1
    s_lshl_b32 s{sT0}, s{sc}, 5
    v_add_u32 v{t2}, s{sT0}, v{t2}
    v_lshlrev_b32 v{t2}, 1, v{t2}
    global_load_ushort v{vP}, v{t2}, s[8:9]
    global_load_ushort v{vP+1}, v{t2}, s[10:11]
    global_load_ushort v{vP+2}, v{t2}, s[16:17]
    s_lshl_b32 s{sM0X}, s{sw8}, 11
    s_lshl_b32 s{sM0W}, s{sT1}, 10
    s_mov_b32 s{sSLOT}, 0
    s_mov_b32 s{sKX}, 0
    s_mov_b32 s{sKW}, 0
    """)

    def issue(role):
        for u in range(2):
            a(f"s_add_u32 s{sT0}, s{sSLOT}, s{sM0X}")
            a(f"s_add_u32 m0, s{sT0}, {1024*u}")
            a("s_nop 0")
            a(f"buffer_load_dwordx4 v{vXo[u]}, s[{sX}:{sX+3}], s{sKX} offen lds")
        a(f"s_add_u32 s{sT0}, s{sSLOT}, s{sM0W}")
        if role == 0:
            for t in range(3):
                a(f"s_add_u32 m0, s{sT0}, {16384 + 4096*t}")
                a(f"s_add_u32 s{sT1}, s{sKW}, {1024*t}")
                a(f"buffer_load_dwordx4 v{vWo}, s[{sW}:{sW+3}], s{sT1} offen lds")
        else:
            for m, sb in enumerate((sBR, sBI)):
                a(f"s_add_u32 m0, s{sT0}, {28672 + 4096*m}")
                a("s_nop 0")
                a(f"buffer_load_dwordx4 v{vWo}, s[{sb}:{sb+3}], s{sKX} offen lds")
        a(f"""
        s_add_u32 s{sKX}, s{sKX}, 128
        s_add_u32 s{sKW}, s{sKW}, {64*3072}
        s_add_u32 s{sSLOT}, s{sSLOT}, {STAGE}
        s_cmp_eq_u32 s{sSLOT}, {4*STAGE}
        s_cselect_b32 s{sSLOT}, 0, s{sSLOT}
        """)

    def gate(nvm):
        m = V.mark()
        p0 = V.alloc(2, 2); p1 = p0 + 1
        acc, xa, xb, wa, wb = [V.alloc() for _ in range(5)]
        a(f"s_waitcnt vmcnt({nvm})")
        a(f"v_mov_b32 v{acc}, 0")
        a(f"v_mov_b32 v{wb}, 0x3f803f80")
        for d in range(4):
            a(f"""
            v_lshlrev_b32 v{xa}, 16, v{vGx+d}
            v_lshlrev_b32 v{wa}, 16, v{vGw+d}
            v_and_b32 v{xb}, 0xffff0000, v{vGx+d}
            v_and_b32 v{p1}, 0xffff0000, v{vGw+d}
            v_mul_f32 v{p0}, v{xa}, v{wa}
            v_mul_f32 v{p1}, v{xb}, v{p1}
            v_cvt_pk_bf16_f32 v{p0}, v{p0}, v{p1}
            v_lshlrev_b32 v{p1}, 16, v{p0}
            v_and_b32 v{p0}, 0xffff0000, v{p0}
            v_add_f32 v{acc}, v{acc}, v{p1}
            v_add_f32 v{acc}, v{acc}, v{p0}
            """)
        for sh in (8, 4, 2, 1):
            a("s_nop 1")
            a(f"v_add_f32_dpp v{acc}, v{acc}, v{acc} row_ror:{sh} row_mask:0xf bank_mask:0xf")
        a(f"""
        s_nop 1
        v_readlane_b32 s{sT0}, v{acc}, 0
        v_readlane_b32 s{sT1}, v{acc}, 16
        v_readlane_b32 s56, v{acc}, 32
        v_readlane_b32 s57, v{acc}, 48
        s_nop 1
        v_mov_b32 v{acc}, s{sT0}
        v_add_f32 v{acc}, s{sT1}, v{acc}
        v_add_f32 v{acc}, s56, v{acc}
        v_add_f32 v{acc}, s57, v{acc}
        v_cvt_pk_bf16_f32 v{acc}, v{acc}, v{acc}
        v_and_b32 v{acc}, 0xffff0000, v{acc}
        v_mul_f32 v{acc}, {f2u(-LOG2E)}, v{acc}
        v_exp_f32 v{acc}, v{acc}
        s_nop 0
        v_add_f32 v{acc}, 1.0, v{acc}
        v_rcp_f32 v{acc}, v{acc}
        s_nop 0
        v_cvt_pk_bf16_f32 v{acc}, v{acc}, v{acc}
        v_and_b32 v{p0}, 0xffff0000, v{acc}
        v_sub_f32 v{p1}, 1.0, v{p0}
        v_cvt_pk_bf16_f32 v{p1}, v{p1}, v{p1}
        v_and_b32 v{p1}, 0xffff0000, v{p1}
        s_lshl_b32 s{sT0}, s{sTG}, 3
        s_add_u32 s{sT0}, s{sT0}, {WS_G}
        v_mov_b32 v{xa}, s{sT0}
        v_cmp_eq_u32 vcc, 0, v1
        s_and_saveexec_b64 s[56:57], vcc
        """)
        assert p1 == p0 + 1 and p0 % 2 == 0, (p0, p1)
        a(f"global_store_dwordx2 v{xa}, v[{p0}:{p1}], s[{sWS}:{sWS+1}]")
        a("s_mov_b64 exec, s[56:57]")
        V.release(m)

    vF = V.alloc(4)
    vG = V.alloc(4)
    def frag_addr_common():
        a(f"""
        v_and_b32 v{t0}, 31, v1                  ; a
        v_lshrrev_b32 v{t1}, 5, v1               ; hk
        v_bfe_u32 v{t2}, v{t0}, 1, 3             ; sw
        v_lshlrev_b32 v{t0}, 7, v{t0}            ; a*128
        """)
        for s in range(4):
            a(f"""
            v_or_b32 v{t3}, {2*s}, v{t1}
            v_xor_b32 v{t3}, v{t3}, v{t2}
            v_lshl_add_u32 v{vF+s}, v{t3}, 4, v{t0}
            """)

    a("s_cmp_ge_u32 s22, 4")
    a("s_cbranch_scc1 L_k1_ssm")
    for role in (0, 1):
        n = 5 if role == 0 else 4
        L = f"L_k1_r{role}"
        if role == 1: a("L_k1_ssm:")
        a(f"s_mov_b32 s{sIT}, 4")
        a(f"{L}_pro:")
        issue(role)
        a(f"s_sub_u32 s{sIT}, s{sIT}, 1")
        a(f"s_cmp_lg_u32 s{sIT}, 0")
        a(f"s_cbranch_scc1 {L}_pro")
        m0 = V.mark()
        frag_addr_common()
        a(f"s_and_b32 s{sT1}, s{sw8}, 3")
        a(f"s_lshl_b32 s{sT0}, s{sT1}, 12")
        if role == 1:
            for s in range(4):
                a(f"v_mov_b32 v{vG+s}, v{vF+s}")
        for s in range(4):
            a(f"v_add_u32 v{vF+s}, s{sT0}, v{vF+s}")
        if role == 0:
            a(f"""
            v_bfe_u32 v{t0}, v1, 2, 2              ; r
            v_lshrrev_b32 v{t1}, 5, v1             ; hk
            v_lshl_add_u32 v{t0}, v{t1}, 3, v{t0}  ; 8hk + r
            v_lshlrev_b32 v{t0}, 6, v{t0}
            v_add_u32 v{t0}, 16384, v{t0}
            v_and_b32 v{t1}, 3, v1                 ; cq
            v_bfe_u32 v{t2}, v1, 4, 1              ; G&1
            v_lshl_add_u32 v{t1}, v{t2}, 2, v{t1}  ; mu
            v_lshl_add_u32 v{vG+1}, v{t1}, 3, v{t0}   ; V: natural
            v_and_b32 v{t2}, 4, v{t1}
            v_bfe_u32 v{t3}, v{t1}, 1, 1
            v_or_b32 v{t2}, v{t2}, v{t3}
            v_and_b32 v{t3}, 1, v{t1}
            v_lshl_or_b32 v{t2}, v{t3}, 1, v{t2}
            v_lshl_add_u32 v{vG}, v{t2}, 3, v{t0}
            """)
        gate(4*n)
        if role == 1:
            vLr, vLi, vCr, vCi = V.alloc(2, 2), None, V.alloc(2, 2), None
            vLi = vLr + 1; vCi = vCr + 1
            vL16 = V.alloc(2, 2); vL128 = V.alloc(2, 2)
            q0, q1, q2, q3, q4 = [V.alloc() for _ in range(5)]
            a(f"""
            v_lshlrev_b32 v{vP}, 16, v{vP}           ; lre
            v_lshlrev_b32 v{vP+1}, 16, v{vP+1}       ; lim
            v_lshlrev_b32 v{vP+2}, 16, v{vP+2}       ; ldt
            v_mul_f32 v{q0}, {f2u(LOG2E)}, v{vP+2}
            v_exp_f32 v{q0}, v{q0}
            s_nop 0
            v_cvt_pk_bf16_f32 v{q0}, v{q0}, v{q0}
            v_and_b32 v{q0}, 0xffff0000, v{q0}
            v_mul_f32 v{q1}, v{q0}, v{vP}            ; zr
            v_mul_f32 v{q2}, v{q0}, v{vP+1}          ; zi
            v_mul_f32 v{q1}, {f2u(LOG2E)}, v{q1}
            v_exp_f32 v{q1}, v{q1}                   ; mag
            v_mul_f32 v{q2}, 0.15915494, v{q2}
            v_rndne_f32 v{q3}, v{q2}
            v_sub_f32 v{q2}, v{q2}, v{q3}
            v_cos_f32 v{q3}, v{q2}
            v_sin_f32 v{q4}, v{q2}
            s_nop 0
            v_mul_f32 v{vLr}, v{q1}, v{q3}
            v_mul_f32 v{vLi}, v{q1}, v{q4}
            v_add_f32 v{q0}, -1.0, v{vLr}            ; nr
            v_mul_f32 v{q1}, v{vP}, v{vP}
            v_fma_f32 v{q1}, v{vP+1}, v{vP+1}, v{q1}
            v_rcp_f32 v{q1}, v{q1}
            v_mul_f32 v{q2}, v{q0}, v{vP}
            v_fma_f32 v{q2}, v{vLi}, v{vP+1}, v{q2}
            v_mul_f32 v{q3}, v{vLi}, v{vP}
            v_fma_f32 v{q3}, -v{q0}, v{vP+1}, v{q3}
            v_mul_f32 v{vCr}, v{q2}, v{q1}
            v_mul_f32 v{vCi}, v{q3}, v{q1}
            """)
            cmul_sq(a, q0, q1, vLr, vLi, q4)
            cmul_sq(a, q2, q3, q0, q1, q4)
            cmul_sq(a, q0, q1, q2, q3, q4)
            cmul_sq(a, vL16, vL16+1, q0, q1, q4)
            cmul_sq(a, q0, q1, vL16, vL16+1, q4)
            cmul_sq(a, q2, q3, q0, q1, q4)
            cmul_sq(a, vL128, vL128+1, q2, q3, q4)
            a(f"""
            s_cmp_eq_u32 s{sR}, 0
            s_cselect_b32 s{sT0}, s{sw8}, 0
            s_cmp_eq_u32 s{sT0}, 4
            s_cbranch_scc0 L_k1_nopar
            v_and_b32 v{q0}, 31, v1
            s_lshl_b32 s{sT0}, s{sc}, 5
            v_add_u32 v{q0}, s{sT0}, v{q0}
            v_lshlrev_b32 v{q0}, 5, v{q0}
            v_add_u32 v{q0}, {WS_PAR}, v{q0}
            v_cmp_gt_u32 vcc, 32, v1
            s_and_saveexec_b64 s[56:57], vcc
            global_store_dwordx2 v{q0}, v[{vLr}:{vLr+1}], s[{sWS}:{sWS+1}]
            global_store_dwordx2 v{q0}, v[{vL16}:{vL16+1}], s[{sWS}:{sWS+1}] offset:8
            global_store_dwordx2 v{q0}, v[{vL128}:{vL128+1}], s[{sWS}:{sWS+1}] offset:16
            s_mov_b64 exec, s[56:57]
L_k1_nopar:
            """)
        nacc = 3 if role == 0 else 2
        vA = [V.alloc(16, 2) for _ in range(nacc)]
        for g in range(nacc):
            for r in range(16): a(f"v_mov_b32 v{vA[g]+r}, 0")
        vx = [V.alloc(4, 2), V.alloc(4, 2)]
        nw = 3 if role == 0 else 2
        vw = [[V.alloc(4, 2) for _ in range(nw)] for _ in range(2)]
        def reads(s, b):
            a(f"ds_read_b128 {vr(vx[b],4)}, v{vF+s}")
            if role == 0:
                for t in range(3):
                    for u in range(2):
                        ad = vG + (1 if t == 2 else 0)
                        a(f"ds_read_b64_tr_b16 v[{vw[b][t]+2*u}:{vw[b][t]+2*u+1}], v{ad} offset:{4096*t + 1024*s + 256*u}")
            else:
                for m in range(2):
                    a(f"ds_read_b128 {vr(vw[b][m],4)}, v{vG+s} offset:{28672 + 4096*m}")
        nrd = 7 if role == 0 else 3
        def mfmas(b):
            if role == 0:
                a(f"v_mfma_f32_32x32x16_bf16 {vr(vA[0],16)}, {vr(vw[b][0],4)}, {vr(vx[b],4)}, {vr(vA[0],16)}")
                a(f"v_mfma_f32_32x32x16_bf16 {vr(vA[1],16)}, {vr(vw[b][1],4)}, {vr(vx[b],4)}, {vr(vA[1],16)}")
                a(f"v_mfma_f32_32x32x16_bf16 {vr(vA[2],16)}, {vr(vx[b],4)}, {vr(vw[b][2],4)}, {vr(vA[2],16)}")
            else:
                for m in range(2):
                    a(f"v_mfma_f32_32x32x16_bf16 {vr(vA[m],16)}, {vr(vx[b],4)}, {vr(vw[b][m],4)}, {vr(vA[m],16)}")
        a(f"s_mov_b32 s{sIT}, 0")
        a(f"s_mov_b32 s{sRD}, 0")
        a(f"s_mov_b32 s59, {-3*STAGE & 0xffffffff:#x}")
        a(f"{L}_loop:")
        a(f"""
        s_cmp_lt_u32 s{sIT}, 6
        s_cbranch_scc0 {L}_w6
        s_waitcnt vmcnt({2*n})
        s_branch {L}_wd
{L}_w6:
        s_cmp_eq_u32 s{sIT}, 6
        s_cbranch_scc0 {L}_w7
        s_waitcnt vmcnt({n})
        s_branch {L}_wd
{L}_w7:
        s_waitcnt vmcnt(0)
{L}_wd:
        s_barrier
        """)
        reads(0, 0)
        a(f"""
        s_sub_u32 s{sT0}, s{sIT}, 1
        s_cmp_lt_u32 s{sT0}, 4
        s_cbranch_scc0 {L}_noissue
        """)
        issue(role)
        a(f"{L}_noissue:")
        for s in range(4):
            b = s & 1
            if s < 3:
                reads(s + 1, 1 - b)
                a(f"s_waitcnt lgkmcnt({nrd})")
            else:
                a("s_waitcnt lgkmcnt(0)")
            mfmas(b)
        a(f"""
        s_add_u32 s{sRD}, s{sRD}, 1
        s_cmp_eq_u32 s{sRD}, 4
        s_cselect_b32 s{sDELTA}, s59, {STAGE}
        s_cselect_b32 s{sRD}, 0, s{sRD}
        """)
        for s in range(4):
            a(f"v_add_u32 v{vF+s}, s{sDELTA}, v{vF+s}")
        for s in range(2 if role == 0 else 4):
            a(f"v_add_u32 v{vG+s}, s{sDELTA}, v{vG+s}")
        a(f"""
        s_add_u32 s{sIT}, s{sIT}, 1
        s_cmp_lt_u32 s{sIT}, 8
        s_cbranch_scc1 {L}_loop
        s_nop 7
        s_nop 7
        """)
        if role == 0:
            o0, o1, o2 = V.alloc(), V.alloc(), V.alloc()
            pk = V.alloc(8, 2)
            a(f"""
            s_and_b32 s{sT1}, s{sw8}, 3
            s_lshl_b32 s{sT0}, s{sR}, 2
            s_add_u32 s{sT0}, s{sT0}, s{sT1}        ; tt32
            s_lshl_b32 s{sT0}, s{sT0}, 10           ; *1024
            s_lshl_b32 s{sT1}, s{sc}, 17            ; head 2c * 65536
            s_add_u32 s{sT0}, s{sT0}, s{sT1}
            v_and_b32 v{t0}, 31, v1                 ; a
            v_lshrrev_b32 v{t1}, 5, v1              ; hk
            v_lshlrev_b32 v{t1}, 9, v{t1}           ; hk*512
            v_bfe_u32 v{t2}, v{t0}, 2, 1
            v_lshlrev_b32 v{t2}, 4, v{t2}
            v_bfe_u32 v{t3}, v{t0}, 3, 2
            v_lshl_add_u32 v{t2}, v{t3}, 2, v{t2}
            v_and_b32 v{t3}, 3, v{t0}
            v_add_u32 v{t2}, v{t2}, v{t3}
            v_lshl_add_u32 v{o0}, v{t2}, 4, v{t1}
            v_add_u32 v{o0}, s{sT0}, v{o0}
            v_and_b32 v{t2}, 0x13, v{t0}
            v_bfe_u32 v{t3}, v{t0}, 2, 1
            v_lshl_or_b32 v{t2}, v{t3}, 3, v{t2}
            v_bfe_u32 v{t3}, v{t0}, 3, 1
            v_lshl_or_b32 v{t2}, v{t3}, 2, v{t2}
            v_lshl_add_u32 v{o1}, v{t2}, 4, v{t1}
            v_add_u32 v{o1}, s{sT0}, v{o1}
            v_add_u32 v{o1}, {WS_KF}, v{o1}
            v_bfe_u32 v{t2}, v{t0}, 2, 1
            v_lshlrev_b32 v{t2}, 3, v{t2}
            v_bfe_u32 v{t3}, v{t0}, 3, 1
            v_lshl_or_b32 v{t2}, v{t3}, 2, v{t2}
            v_and_b32 v{t3}, 3, v{t0}
            v_or_b32 v{t2}, v{t2}, v{t3}            ; m
            v_lshlrev_b32 v{t2}, 4, v{t2}
            v_lshrrev_b32 v{t3}, 1, v{t1}           ; h*256
            v_add_u32 v{t2}, v{t2}, v{t3}
            v_lshrrev_b32 v{t3}, 4, v{t0}
            v_lshl_add_u32 v{t2}, v{t3}, 16, v{t2}
            v_add_u32 v{o2}, s{sT0}, v{t2}
            v_add_u32 v{o2}, {WS_VF}, v{o2}
            s_mov_b32 s{sT0}, {f2u(0.25*LOG2E)}
            """)
            for r in range(16): a(f"v_mul_f32 v{vA[0]+r}, s{sT0}, v{vA[0]+r}")
            for j in range(8): a(f"v_cvt_pk_bf16_f32 v{pk+j}, v{vA[0]+2*j}, v{vA[0]+2*j+1}")
            a(f"global_store_dwordx4 v{o0}, v[{pk}:{pk+3}], s[{sWS}:{sWS+1}]")
            a(f"v_add_u32 v{o0}, 0x10000, v{o0}")
            a(f"global_store_dwordx4 v{o0}, v[{pk+4}:{pk+7}], s[{sWS}:{sWS+1}]")
            pk2 = V.alloc(8, 2)
            for j in range(8): a(f"v_cvt_pk_bf16_f32 v{pk2+j}, v{vA[1]+2*j}, v{vA[1]+2*j+1}")
            a(f"global_store_dwordx4 v{o1}, v[{pk2}:{pk2+3}], s[{sWS}:{sWS+1}]")
            a(f"v_add_u32 v{o1}, 0x10000, v{o1}")
            a(f"global_store_dwordx4 v{o1}, v[{pk2+4}:{pk2+7}], s[{sWS}:{sWS+1}]")
            pk3 = V.alloc(8, 2)
            for j in range(8): a(f"v_cvt_pk_bf16_f32 v{pk3+j}, v{vA[2]+2*j}, v{vA[2]+2*j+1}")
            a(f"global_store_dwordx4 v{o2}, v[{pk3}:{pk3+3}], s[{sWS}:{sWS+1}]")
            a(f"global_store_dwordx4 v{o2}, v[{pk3+4}:{pk3+7}], s[{sWS}:{sWS+1}] offset:512")
            a("s_endpgm")
        else:
            RE, IM = vA
            U = [V.alloc(16, 2), V.alloc(16, 2)]
            ur, ui = U
            for j in range(8):
                r = 2*j
                a(f"v_pk_mul_f32 v[{ur+r}:{ur+r+1}], v[{RE+r}:{RE+r+1}], v[{vCr}:{vCr+1}] op_sel_hi:[1,0]")
                a(f"v_pk_mul_f32 v[{ui+r}:{ui+r+1}], v[{IM+r}:{IM+r+1}], v[{vCr}:{vCr+1}] op_sel_hi:[1,0]")
                a(f"v_pk_fma_f32 v[{ur+r}:{ur+r+1}], v[{IM+r}:{IM+r+1}], v[{vCr}:{vCr+1}], v[{ur+r}:{ur+r+1}] op_sel:[0,1,0] op_sel_hi:[1,1,1] neg_lo:[0,1,0] neg_hi:[0,1,0]")
                a(f"v_pk_fma_f32 v[{ui+r}:{ui+r+1}], v[{RE+r}:{RE+r+1}], v[{vCr}:{vCr+1}], v[{ui+r}:{ui+r+1}] op_sel:[0,1,0] op_sel_hi:[1,1,1]")
            for r in range(1, 16):
                a(f"v_fma_f32 v{ur+r}, v{vLr}, v{ur+r-1}, v{ur+r}")
                a(f"v_fma_f32 v{ui+r}, v{vLr}, v{ui+r-1}, v{ui+r}")
                a(f"v_fma_f32 v{ur+r}, -v{vLi}, v{ui+r-1}, v{ur+r}")
                a(f"v_fma_f32 v{ui+r}, v{vLi}, v{ur+r-1}, v{ui+r}")
            e = V.alloc(2, 2); ex = V.alloc(); exr = V.alloc()
            a(f"""
            v_mov_b32 v{e}, v{ur+15}
            v_mov_b32 v{e+1}, v{ui+15}
            s_and_b32 s{sT1}, s{sw8}, 3
            s_lshl_b32 s{sT0}, s{sT1}, 9
            s_add_u32 s{sT0}, s{sT0}, {4*STAGE}
            v_lshlrev_b32 v{ex}, 3, v1
            v_add_u32 v{ex}, s{sT0}, v{ex}          ; (2w+h)*256 + p*8 = w*512 + lane*8
            ds_write_b64 v{ex}, v[{e}:{e+1}]
            v_and_b32 v{exr}, 31, v1
            v_lshlrev_b32 v{exr}, 3, v{exr}
            v_add_u32 v{exr}, {4*STAGE}, v{exr}
            """)
            pk = V.alloc(16, 2)
            for j in range(8): a(f"v_cvt_pk_bf16_f32 v{pk+j}, v{ur+2*j}, v{ur+2*j+1}")
            for j in range(8): a(f"v_cvt_pk_bf16_f32 v{pk+8+j}, v{ui+2*j}, v{ui+2*j+1}")
            o0 = V.alloc()
            a(f"""
            s_lshl_b32 s{sT0}, s{sR}, 4
            s_add_u32 s{sT0}, s{sT0}, s{sc}
            s_lshl_b32 s{sT0}, s{sT0}, 2
            s_add_u32 s{sT0}, s{sT0}, s{sT1}       ; (R*16+c)*4+w
            s_mov_b32 s58, s{sT0}
            s_lshl_b32 s{sT0}, s{sT0}, 12
            s_add_u32 s{sT0}, s{sT0}, {WS_HL}
            v_lshlrev_b32 v{o0}, 4, v1
            v_add_u32 v{o0}, s{sT0}, v{o0}
            """)
            for j in range(4):
                a(f"global_store_dwordx4 v{o0}, v[{pk+4*j}:{pk+4*j+3}], s[{sWS}:{sWS+1}] offset:{1024*j}")
            a("s_waitcnt lgkmcnt(0)")
            a("s_barrier")
            E = V.alloc(14, 2)
            for s in range(7):
                a(f"ds_read_b64 v[{E+2*s}:{E+2*s+1}], v{exr} offset:{256*s}")
            cc = V.alloc(2, 2); tt = V.alloc(2, 2)
            a(f"v_mov_b32 v{cc}, 0")
            a(f"v_mov_b32 v{cc+1}, 0")
            a(f"s_lshl_b32 s{sT0}, s{sT1}, 1")
            a("s_waitcnt lgkmcnt(0)")
            def cstep(dst, src, add):
                a(f"v_pk_fma_f32 v[{tt}:{tt+1}], v[{src}:{src+1}], v[{vL16}:{vL16+1}], v[{add}:{add+1}] op_sel_hi:[0,1,1]")
                a(f"v_pk_fma_f32 v[{dst}:{dst+1}], v[{src}:{src+1}], v[{vL16}:{vL16+1}], v[{tt}:{tt+1}] op_sel:[1,1,0] op_sel_hi:[1,0,1] neg_lo:[0,1,0]")
            for s in range(6):
                a(f"s_cmp_gt_u32 s{sT0}, {s}")
                a("s_cbranch_scc0 L_k1_cdone")
                cstep(cc, cc, E + 2*s)
            a("L_k1_cdone:")
            e2 = V.alloc(2, 2); c1 = V.alloc(2, 2)
            a(f"""
            s_lshl_b32 s{sT0}, s{sT1}, 9
            v_add_u32 v{exr}, s{sT0}, v{exr}
            ds_read_b64 v[{e2}:{e2+1}], v{exr}
            s_waitcnt lgkmcnt(0)
            """)
            cstep(c1, cc, e2)
            a(f"""
            v_cmp_lt_u32 vcc, 31, v1
            s_nop 1
            v_cndmask_b32 v{cc}, v{cc}, v{c1}, vcc
            v_cndmask_b32 v{cc+1}, v{cc+1}, v{c1+1}, vcc
            s_lshl_b32 s{sT0}, s58, 9
            s_add_u32 s{sT0}, s{sT0}, {WS_CS}
            v_lshlrev_b32 v{o0}, 3, v1
            v_add_u32 v{o0}, s{sT0}, v{o0}
            global_store_dwordx2 v{o0}, v[{cc}:{cc+1}], s[{sWS}:{sWS+1}]
            s_cmp_eq_u32 s{sT1}, 3
            s_cbranch_scc0 L_k1_end
            """)
            cstep(c1, cc, e)
            o1 = V.alloc()
            a(f"""
            v_and_b32 v{o1}, 31, v1
            v_lshlrev_b32 v{o1}, 7, v{o1}          ; p*128
            s_lshl_b32 s{sT0}, s{sc}, 12           ; c*4096
            s_lshl_b32 s{sT1}, s{sR}, 3
            s_add_u32 s{sT0}, s{sT0}, s{sT1}
            s_add_u32 s{sT0}, s{sT0}, {WS_EP}
            v_add_u32 v{o1}, s{sT0}, v{o1}
            v_cmp_lt_u32 vcc, 31, v1
            s_and_saveexec_b64 s[56:57], vcc
            global_store_dwordx2 v{o1}, v[{c1}:{c1+1}], s[{sWS}:{sWS+1}]
            """)
        V.release(m0)
    a(f"{END}:")
    a("s_endpgm")
    return name, V.hi, L1_LDS
```

```python
from asmlib import *
from k1 import *

L2_LDS = 131072 + 16384
PRIO = {0: 3, 8: 2, 13: 1, 15: 0}

def k2(a, prio=PRIO):
    name = "k2_kernel"
    a(kernel_header(name))
    END = "L_k2_end"
    sWS = 4
    sw8, sxcd, si, shead, sqt, sR, sc = 6, 7, 8, 9, 10, 11, 12
    sKV = 16
    sT0, sT1, sIT, sNEXT, sFB, sM0, sSO = 20, 21, 22, 23, 24, 25, 26
    sMASK = 28
    sSAVE = 30
    a(f"""
    s_cmp_ge_u32 s2, 256
    s_cbranch_scc1 {END}
    s_load_dwordx2 s[{sWS}:{sWS+1}], s[0:1], 120
    v_lshrrev_b32 v2, 6, v0
    v_and_b32 v1, 63, v0
    s_and_b32 s{sxcd}, s2, 7
    v_readfirstlane_b32 s{sw8}, v2
    s_lshr_b32 s{si}, s2, 3
    s_and_b32 s{shead}, s{si}, 3
    s_lshl_b32 s{sT0}, s{sxcd}, 2
    s_add_u32 s{shead}, s{shead}, s{sT0}         ; head
    s_lshr_b32 s{sqt}, s{si}, 2
    s_lshl_b32 s{sqt}, s{sqt}, 3
    s_add_u32 s{sqt}, s{sqt}, s{sw8}             ; q tile
    s_lshr_b32 s{sR}, s{si}, 4
    s_lshl_b32 s{sT0}, s{sxcd}, 1
    s_add_u32 s{sR}, s{sR}, s{sT0}               ; R'
    s_and_b32 s{sc}, s{si}, 15                   ; c'
    """)
    V = Regs(3, 256, "k2 vgpr")
    vL16o = V.alloc()
    t0, t1, t2, t3 = [V.alloc() for _ in range(4)]
    vQ = V.alloc(4, 2)
    vPar = V.alloc(4, 2); vL128 = V.alloc(2, 2); vEP = V.alloc(32, 2); vCS = V.alloc(2, 2); vHL = V.alloc(16, 2)
    a(f"""
    v_lshlrev_b32 v{vL16o}, 4, v1
    s_lshl_b32 s{sT0}, s{shead}, 16
    s_lshl_b32 s{sT1}, s{sqt}, 10
    s_add_u32 s{sT1}, s{sT1}, s{sT0}
    v_add_u32 v{t0}, s{sT1}, v{vL16o}
    s_add_u32 s{sSO}, s{sT0}, 0                 ; head*65536
    s_lshl_b32 s{sM0}, s{sw8}, 10
    s_add_u32 s{sSO}, s{sSO}, s{sM0}            ; + w8*1024
    s_waitcnt lgkmcnt(0)
    global_load_dwordx4 {vr(vQ,4)}, v{t0}, s[{sWS}:{sWS+1}]
    s_add_u32 s{sKV}, s{sWS}, {WS_KF}
    s_addc_u32 s{sKV+1}, s{sWS+1}, 0
    s_and_b32 s{sKV+1}, s{sKV+1}, 0xffff
    s_mov_b32 s{sKV+2}, 0x400000
    s_mov_b32 s{sKV+3}, 0x20000
    s_cmp_lt_u32 s{sw8}, 4
    s_cbranch_scc1 L_k2_noside_ld
    """)
    a(f"""
    v_and_b32 v{t0}, 31, v1
    s_lshl_b32 s{sT0}, s{sc}, 5
    v_add_u32 v{t1}, s{sT0}, v{t0}
    v_lshlrev_b32 v{t1}, 5, v{t1}
    v_add_u32 v{t1}, {WS_PAR}, v{t1}
    global_load_dwordx4 {vr(vPar,4)}, v{t1}, s[{sWS}:{sWS+1}]
    global_load_dwordx2 {vr(vL128,2)}, v{t1}, s[{sWS}:{sWS+1}] offset:16
    v_lshlrev_b32 v{t1}, 7, v{t0}
    s_lshl_b32 s{sT0}, s{sc}, 12
    s_add_u32 s{sT0}, s{sT0}, {WS_EP}
    v_add_u32 v{t1}, s{sT0}, v{t1}
    """)
    for j in range(8):
        a(f"global_load_dwordx4 v[{vEP+4*j}:{vEP+4*j+3}], v{t1}, s[{sWS}:{sWS+1}] offset:{16*j}")
    a(f"""
    s_lshl_b32 s{sT0}, s{sR}, 4
    s_add_u32 s{sT0}, s{sT0}, s{sc}
    s_lshl_b32 s{sT0}, s{sT0}, 2
    s_sub_u32 s{sT1}, s{sw8}, 4
    s_add_u32 s{sT0}, s{sT0}, s{sT1}            ; (R*16+c)*4+w
    s_lshl_b32 s{sT1}, s{sT0}, 9
    s_add_u32 s{sT1}, s{sT1}, {WS_CS}
    v_lshlrev_b32 v{t1}, 3, v1
    v_add_u32 v{t1}, s{sT1}, v{t1}
    global_load_dwordx2 {vr(vCS,2)}, v{t1}, s[{sWS}:{sWS+1}]
    s_lshl_b32 s{sT1}, s{sT0}, 12
    s_add_u32 s{sT1}, s{sT1}, {WS_HL}
    v_add_u32 v{t1}, s{sT1}, v{vL16o}
    """)
    for j in range(4):
        a(f"global_load_dwordx4 v[{vHL+4*j}:{vHL+4*j+3}], v{t1}, s[{sWS}:{sWS+1}] offset:{1024*j}")
    a("L_k2_noside_ld:")
    a(f"""
    s_mov_b32 s{sIT}, 8
L_k2_dma:
    s_mov_b32 m0, s{sM0}
    s_add_u32 s{sT0}, s{sSO}, 0x200000
    buffer_load_dwordx4 v{vL16o}, s[{sKV}:{sKV+3}], s{sSO} offen lds
    s_add_u32 m0, s{sM0}, 65536
    s_add_u32 s{sM0}, s{sM0}, 8192
    buffer_load_dwordx4 v{vL16o}, s[{sKV}:{sKV+3}], s{sT0} offen lds
    s_add_u32 s{sSO}, s{sSO}, 8192
    s_sub_u32 s{sIT}, s{sIT}, 1
    s_cmp_lg_u32 s{sIT}, 0
    s_cbranch_scc1 L_k2_dma
    """)
    vS = [V.alloc(16, 2), V.alloc(16, 2)]
    vO = V.alloc(16, 2); vNM = V.alloc(16, 2)
    vK = [V.alloc(4, 2), V.alloc(4, 2)]
    vV = [V.alloc(8, 2), V.alloc(8, 2)]
    vIdx, vKa, vVa = V.alloc(), V.alloc(), V.alloc()
    a(f"""
    v_mov_b32 v{vIdx}, 0xdddddddd
    s_mov_b32 s{sMASK}, 0x0000ffff
    s_mov_b32 s{sMASK+1}, 0x0000ffff
    s_mov_b32 s{sFB}, 0
    """)
    for r in range(16): a(f"v_mov_b32 v{vNM+r}, 0")
    for b in range(2):
        for r in range(8): a(f"v_mov_b32 v{vV[b]+r}, 0x3f803f80")
    a(f"""
    s_waitcnt vmcnt(14)
    s_barrier
L_k2_restart:
    v_mov_b32 v{vKa}, v{vL16o}
    v_and_b32 v{t0}, 15, v1
    v_lshlrev_b32 v{t0}, 4, v{t0}
    v_lshrrev_b32 v{t1}, 5, v1
    v_lshl_add_u32 v{t0}, v{t1}, 8, v{t0}
    v_add_u32 v{vVa}, 65536, v{t0}
    """)
    for r in range(16): a(f"v_mov_b32 v{vO+r}, 0")
    a(f"""
    ds_read_b128 {vr(vK[1],4)}, v{vKa}
    ds_read_b128 {vr(vK[0],4)}, v{vKa} offset:1024
    s_mov_b64 exec, s[{sMASK}:{sMASK+1}]
    ds_read_b128 v[{vV[0]}:{vV[0]+3}], v{vVa}
    ds_read_b128 v[{vV[0]+4}:{vV[0]+7}], v{vVa} offset:512
    s_mov_b64 exec, -1
    s_waitcnt lgkmcnt(3)
    v_mfma_f32_32x32x16_bf16 {vr(vS[0],16)}, {vr(vK[1],4)}, {vr(vQ,4)}, {vr(vNM,16)}
    s_mov_b32 s{sIT}, 0
    s_mov_b32 s{sNEXT}, 1
    s_setprio {prio.get(0, 0)}
    s_nop 7
.p2align 6
L_k2_loop:
    """)
    for u in range(4):
        cur, nxt = u & 1, 1 - (u & 1)
        S = vS[cur]
        a("s_waitcnt lgkmcnt(0)")
        a(f"v_mfma_f32_32x32x16_bf16 {vr(vS[nxt],16)}, {vr(vK[cur],4)}, {vr(vQ,4)}, {vr(vNM,16)}")
        a(f"ds_read_b128 {vr(vK[nxt],4)}, v{vKa} offset:{1024*(u+2)}")
        a(f"s_mov_b64 exec, s[{sMASK}:{sMASK+1}]")
        a(f"ds_read_b128 v[{vV[nxt]}:{vV[nxt]+3}], v{vVa} offset:{1024*(u+1)}")
        a(f"ds_read_b128 v[{vV[nxt]+4}:{vV[nxt]+7}], v{vVa} offset:{1024*(u+1)+512}")
        a("s_mov_b64 exec, -1")
        for i in range(10): a(f"v_exp_f32 v{S+i}, v{S+i}")
        a(f"v_smfmac_f32_32x32x32_bf16 {vr(vO,16)}, v[{vV[cur]}:{vV[cur]+3}], v[{S}:{S+7}], v{vIdx}")
        for i in range(10, 16): a(f"v_exp_f32 v{S+i}, v{S+i}")
        if u == 3:
            a(f"v_add_u32 v{vKa}, 4096, v{vKa}")
            a(f"v_add_u32 v{vVa}, 4096, v{vVa}")
        else:
            a("s_nop 1")
        a(f"v_smfmac_f32_32x32x32_bf16 {vr(vO,16)}, v[{vV[cur]+4}:{vV[cur]+7}], v[{S+8}:{S+15}], v{vIdx}")
    a(f"""
    s_add_u32 s{sIT}, s{sIT}, 1
    s_cmp_lt_u32 s{sIT}, s{sNEXT}
    s_cbranch_scc1 L_k2_loop
    """)
    events = sorted(set([1, 3, 16] + [k for k in prio if k > 0]))
    for idx, ev in enumerate(events):
        nxt_ev = events[idx+1] if idx + 1 < len(events) else None
        if ev == 16: break
        lab = f"L_k2_ev{ev}_skip"
        a(f"s_cmp_eq_u32 s{sIT}, {ev}")
        a(f"s_cbranch_scc0 {lab}")
        a(f"s_mov_b32 s{sNEXT}, {nxt_ev}")
        if ev in prio: a(f"s_setprio {prio[ev]}")
        if ev in (1, 3):
            a(f"s_cmp_lg_u32 s{sFB}, 0")
            a("s_cbranch_scc1 L_k2_loop")
            a(f"s_waitcnt vmcnt({12 if ev == 1 else 0})")
            a("s_barrier")
            if ev == 3:
                a(f"s_cmp_ge_u32 s{sw8}, 4")
                a("s_cbranch_scc1 L_k2_side")
        a("s_branch L_k2_loop")
        a(f"{lab}:")
    mk = V.mark()
    e0, e1, e2 = V.alloc(), V.alloc(), V.alloc()
    pk = V.alloc(4, 2)
    a(f"""
    s_setprio 0
    s_nop 7
    s_nop 7
    v_add_f32 v{e0}, |v{vO}|, |v{vO+1}|
    v_add_f32 v{e1}, |v{vO+2}|, |v{vO+3}|
    v_add_f32 v{e0}, v{e0}, |v{vO+4}|
    v_add_f32 v{e1}, v{e1}, |v{vO+5}|
    v_add_f32 v{e0}, v{e0}, |v{vO+6}|
    v_add_f32 v{e1}, v{e1}, |v{vO+7}|
    v_add_f32 v{e0}, v{e0}, v{e1}
    v_cmp_ge_f32 vcc, {f2u(2.0**120)}, v{e0}
    s_mov_b32 s{sT0}, {f2u(2.0**-60)}
    s_mov_b32 s{sT1}, {f2u(2.0**60)}
    v_cmp_le_f32 s[32:33], s{sT0}, v{vO+8}
    v_cmp_ge_f32 s[34:35], s{sT1}, v{vO+8}
    s_nop 1
    s_and_b64 vcc, vcc, s[32:33]
    s_and_b64 vcc, vcc, s[34:35]
    s_cmp_lg_u32 s{sFB}, 0
    s_cbranch_scc1 L_k2_fin
    s_cmp_eq_u64 vcc, exec
    s_cbranch_scc0 L_k2_slow
L_k2_fin:
    v_rcp_f32 v{e0}, v{vO+8}
    s_mul_i32 s{sT0}, s{sqt}, 96
    s_add_u32 s{sT0}, s{sT0}, s{shead}
    s_lshl_b32 s{sT0}, s{sT0}, 10
    s_add_u32 s{sT0}, s{sT0}, {WS_AF}
    v_add_u32 v{e1}, s{sT0}, v{vL16o}
    """)
    for r in range(8): a(f"v_mul_f32 v{vO+r}, v{vO+r}, v{e0}")
    for j in range(4): a(f"v_cvt_pk_bf16_f32 v{pk+j}, v{vO+2*j}, v{vO+2*j+1}")
    a(f"global_store_dwordx4 v{e1}, v[{pk}:{pk+3}], s[{sWS}:{sWS+1}]")
    a("s_endpgm")
    a(f"""
L_k2_slow:
    s_mov_b32 s{sFB}, 1
    v_mov_b32 v{e0}, 0xff800000
    v_mov_b32 v{vKa}, v{vL16o}
    s_mov_b32 s{sIT}, 64
L_k2_mx:
    ds_read_b128 {vr(vK[0],4)}, v{vKa}
    v_add_u32 v{vKa}, 1024, v{vKa}
    s_waitcnt lgkmcnt(0)
    v_mfma_f32_32x32x16_bf16 {vr(vS[0],16)}, {vr(vK[0],4)}, {vr(vQ,4)}, 0
    s_nop 7
    s_nop 7
    """)
    for j in range(8): a(f"v_max3_f32 v{e0}, v{vS[0]+2*j}, v{vS[0]+2*j+1}, v{e0}")
    a(f"""
    s_sub_u32 s{sIT}, s{sIT}, 1
    s_cmp_lg_u32 s{sIT}, 0
    s_cbranch_scc1 L_k2_mx
    v_mov_b32 v{e1}, v{e0}
    s_nop 1
    v_permlane32_swap_b32 v{e0}, v{e1}
    s_nop 1
    v_max_f32 v{e0}, v{e0}, v{e1}
    """)
    for r in range(16): a(f"v_sub_f32 v{vNM+r}, 0, v{e0}")
    a("s_branch L_k2_restart")
    V.release(mk)
    a("L_k2_side:")
    mk = V.mark()
    vT = V.alloc(2, 2); tt = V.alloc(2, 2); t1p = V.alloc(2, 2)
    Lam, L16 = vPar, vPar + 2
    def cfma(dst, src, L, add):
        a(f"v_pk_fma_f32 v[{tt}:{tt+1}], v[{src}:{src+1}], v[{L}:{L+1}], v[{add}:{add+1}] op_sel_hi:[0,1,1]")
        a(f"v_pk_fma_f32 v[{dst}:{dst+1}], v[{src}:{src+1}], v[{L}:{L+1}], v[{tt}:{tt+1}] op_sel:[1,1,0] op_sel_hi:[1,0,1] neg_lo:[0,1,0]")
    def cmul(dst, src, L):
        a(f"v_pk_mul_f32 v[{tt}:{tt+1}], v[{src}:{src+1}], v[{L}:{L+1}] op_sel_hi:[0,1]")
        a(f"v_pk_fma_f32 v[{dst}:{dst+1}], v[{src}:{src+1}], v[{L}:{L+1}], v[{tt}:{tt+1}] op_sel:[1,1,0] op_sel_hi:[1,0,1] neg_lo:[0,1,0]")
    a(f"v_mov_b32 v{vT}, 0")
    a(f"v_mov_b32 v{vT+1}, 0")
    for j in range(15):
        a(f"s_cmp_gt_u32 s{sR}, {j}")
        a("s_cbranch_scc0 L_k2_sdone")
        cfma(vT, vT, vL128, vEP + 2*j)
    a(f"""
L_k2_sdone:
    s_sub_u32 s{sT0}, s{sw8}, 4
    s_lshl_b32 s{sT1}, s{sT0}, 1
L_k2_pw:
    s_cmp_eq_u32 s{sT1}, 0
    s_cbranch_scc1 L_k2_pwd
    """)
    cmul(vT, vT, L16)
    a(f"""
    s_sub_u32 s{sT1}, s{sT1}, 1
    s_branch L_k2_pw
L_k2_pwd:
    """)
    cmul(t1p, vT, L16)
    a(f"""
    v_cmp_lt_u32 vcc, 31, v1
    s_nop 1
    v_cndmask_b32 v{vT}, v{vT}, v{t1p}, vcc
    v_cndmask_b32 v{vT+1}, v{vT+1}, v{t1p+1}, vcc
    v_pk_add_f32 v[{vT}:{vT+1}], v[{vT}:{vT+1}], v[{vCS}:{vCS+1}]
    """)
    sel = V.alloc(2)
    hre = V.alloc(16, 2); him = V.alloc(16, 2); out = V.alloc(16, 2)
    a(f"v_mov_b32 v{sel}, 0x00003f80")
    a(f"v_mov_b32 v{sel+1}, 0x3f800000")
    for r in range(16):
        cmul(vT, vT, Lam)
        a(f"v_dot2_f32_bf16 v{hre+r}, v{vHL + r//2}, v{sel + (r&1)}, v{vT}")
        a(f"v_dot2_f32_bf16 v{him+r}, v{vHL + 8 + r//2}, v{sel + (r&1)}, v{vT+1}")
    a("s_nop 2")
    for j in range(8): a(f"v_cvt_pk_bf16_f32 v{out+j}, v{hre+2*j}, v{hre+2*j+1}")
    for j in range(8): a(f"v_cvt_pk_bf16_f32 v{out+8+j}, v{him+2*j}, v{him+2*j+1}")
    wa, ra = V.alloc(), V.alloc()
    a(f"""
    s_lshl_b32 s{sT1}, s{sT0}, 12
    s_add_u32 s{sT1}, s{sT1}, 131072
    v_and_b32 v{t0}, 31, v1
    v_lshlrev_b32 v{t0}, 6, v{t0}
    v_lshrrev_b32 v{t1}, 5, v1
    v_lshl_add_u32 v{t0}, v{t1}, 5, v{t0}
    v_add_u32 v{wa}, s{sT1}, v{t0}
    ds_write_b128 v{wa}, v[{out}:{out+3}]
    ds_write_b128 v{wa}, v[{out+4}:{out+7}] offset:16
    ds_write_b128 v{wa}, v[{out+8}:{out+11}] offset:2048
    ds_write_b128 v{wa}, v[{out+12}:{out+15}] offset:2064
    v_bfe_u32 v{t0}, v1, 2, 2              ; r
    v_lshrrev_b32 v{t1}, 5, v1             ; hk
    v_lshl_add_u32 v{t0}, v{t1}, 3, v{t0}
    v_lshlrev_b32 v{t0}, 6, v{t0}
    v_and_b32 v{t1}, 3, v1
    v_bfe_u32 v{t2}, v1, 4, 1
    v_lshl_add_u32 v{t1}, v{t2}, 2, v{t1}
    v_lshl_add_u32 v{t0}, v{t1}, 3, v{t0}
    v_add_u32 v{ra}, s{sT1}, v{t0}
    s_waitcnt lgkmcnt(0)
    """)
    fr = V.alloc(16, 2)
    for part in range(2):
        for ks in range(2):
            f = 2*part + ks
            for u in range(2):
                a(f"ds_read_b64_tr_b16 v[{fr+4*f+2*u}:{fr+4*f+2*u+1}], v{ra} offset:{2048*part + 1024*ks + 256*u}")
    a(f"""
    s_lshl_b32 s{sT1}, s{sR}, 2
    s_add_u32 s{sT1}, s{sT1}, s{sT0}          ; tt32 = 4R+w
    s_mul_i32 s{sT1}, s{sT1}, 96
    s_lshl_b32 s{sT0}, s{sc}, 1
    s_add_u32 s{sT1}, s{sT1}, s{sT0}
    s_add_u32 s{sT1}, s{sT1}, 32
    s_lshl_b32 s{sT1}, s{sT1}, 10
    s_add_u32 s{sT1}, s{sT1}, {WS_AF}
    v_add_u32 v{t0}, s{sT1}, v{vL16o}
    v_add_u32 v{t1}, 32768, v{t0}
    s_waitcnt lgkmcnt(0)
    global_store_dwordx4 v{t0}, v[{fr}:{fr+3}], s[{sWS}:{sWS+1}]
    global_store_dwordx4 v{t0}, v[{fr+4}:{fr+7}], s[{sWS}:{sWS+1}] offset:1024
    global_store_dwordx4 v{t1}, v[{fr+8}:{fr+11}], s[{sWS}:{sWS+1}]
    global_store_dwordx4 v{t1}, v[{fr+12}:{fr+15}], s[{sWS}:{sWS+1}] offset:1024
    s_branch L_k2_loop
    """)
    V.release(mk)
    a(f"{END}:")
    a("s_endpgm")
    return name, V.hi, L2_LDS
```

```python
from asmlib import *
from k1 import *

K3_STG = 24576
L3_LDS = 6 * K3_STG

def k3(a):
    name = "k3_kernel"
    a(kernel_header(name))
    END = "L_k3_end"
    sWS = 4
    sw6, sxcd, si, stt2, sct, stsub, skg = 6, 7, 8, 9, 10, 11, 12
    sSRD = 16
    sT0, sT1, sSO, sM0 = 20, 21, 22, 23
    a(f"""
    s_cmp_ge_u32 s2, 256
    s_cbranch_scc1 {END}
    s_load_dwordx2 s[{sWS}:{sWS+1}], s[0:1], 120
    s_load_dwordx2 s[24:25], s[0:1], 0
    s_load_dwordx2 s[26:27], s[0:1], 16
    s_load_dwordx4 s[28:31], s[0:1], 64
    s_load_dwordx2 s[32:33], s[0:1], 88
    s_load_dwordx2 s[34:35], s[0:1], 104
    v_lshrrev_b32 v2, 6, v0
    v_and_b32 v1, 63, v0
    s_and_b32 s{sxcd}, s2, 7
    v_readfirstlane_b32 s{sw6}, v2
    s_lshr_b32 s{si}, s2, 3
    s_and_b32 s{stt2}, s{si}, 3
    s_lshl_b32 s{sT0}, s{sxcd}, 2
    s_add_u32 s{stt2}, s{stt2}, s{sT0}
    s_lshr_b32 s{sct}, s{si}, 2
    s_and_b32 s{stsub}, s{sw6}, 1
    s_lshr_b32 s{skg}, s{sw6}, 1
    """)
    V = Regs(3, 256, "k3 vgpr")
    vL16o = V.alloc(); vAo = V.alloc()
    t0, t1, t2, t3 = [V.alloc() for _ in range(4)]
    vD = [V.alloc(), V.alloc()]
    vA = V.alloc(128, 2)
    a(f"""
    v_lshlrev_b32 v{vL16o}, 4, v1
    s_lshl_b32 s{sT0}, s{stt2}, 1
    s_add_u32 s{sT0}, s{sT0}, s{stsub}          ; tt32
    s_mov_b32 s36, s{sT0}
    s_mul_i32 s{sT0}, s{sT0}, 96
    s_lshl_b32 s{sT1}, s{skg}, 5
    s_add_u32 s{sT0}, s{sT0}, s{sT1}
    s_lshl_b32 s{sT0}, s{sT0}, 10
    s_add_u32 s{sT0}, s{sT0}, {WS_AF}
    v_add_u32 v{vAo}, s{sT0}, v{vL16o}
    v_lshrrev_b32 v{t0}, 3, v1
    v_and_b32 v{t1}, 7, v1                      ; chunk'
    s_cmp_eq_u32 s{skg}, 0
    s_cbranch_scc0 L_k3_cofs
    v_bfe_u32 v{t2}, v{t0}, 1, 1
    v_lshlrev_b32 v{t2}, 2, v{t2}
    v_xor_b32 v{t2}, v{t2}, v{t1}
    v_lshlrev_b32 v{t2}, 4, v{t2}
    v_lshl_add_u32 v{vD[0]}, v{t0}, 10, v{t2}
    v_mov_b32 v{vD[1]}, v{vD[0]}
    s_lshl_b32 s{sSO}, s{sct}, 7                ; ct*128 B
    s_waitcnt lgkmcnt(0)
    s_mov_b32 s{sSRD}, s26
    s_and_b32 s{sSRD+1}, s27, 0xffff
    s_mov_b32 s37, 65536
    s_branch L_k3_ofsd
L_k3_cofs:
    v_lshrrev_b32 v{t2}, 1, v{t0}               ; (row>>1) 0..3
    v_xor_b32 v{t3}, v{t2}, v{t1}
    v_lshlrev_b32 v{t3}, 4, v{t3}
    v_lshl_add_u32 v{vD[0]}, v{t0}, 10, v{t3}
    v_or_b32 v{t2}, 4, v{t2}
    v_xor_b32 v{t3}, v{t2}, v{t1}
    v_lshlrev_b32 v{t3}, 4, v{t3}
    v_lshl_add_u32 v{vD[1]}, v{t0}, 10, v{t3}
    s_lshl_b32 s{sSO}, s{sct}, 16
    s_waitcnt lgkmcnt(0)
    s_cmp_eq_u32 s{skg}, 1
    s_cselect_b32 s{sSRD}, s28, s30
    s_cselect_b32 s{sSRD+1}, s29, s31
    s_and_b32 s{sSRD+1}, s{sSRD+1}, 0xffff
    s_mov_b32 s37, 128
L_k3_ofsd:
    s_mov_b32 s{sSRD+2}, 0x80000
    s_mov_b32 s{sSRD+3}, 0x20000
    s_lshl_b32 s{sT0}, s{stsub}, 15
    s_add_u32 s{sSO}, s{sSO}, s{sT0}
    s_lshl_b32 s{sM0}, s{skg}, 13
    s_lshl_b32 s{sT0}, s{stsub}, 12
    s_add_u32 s{sM0}, s{sM0}, s{sT0}
    """)
    def dma(j):
        for q in range(4):
            a(f"s_add_u32 m0, s{sM0}, {(j % 6) * K3_STG + 1024*q}")
            a(f"s_add_u32 s{sT0}, s{sSO}, {8192*q}")
            a(f"buffer_load_dwordx4 v{vD[q & 1]}, s[{sSRD}:{sSRD+3}], s{sT0} offen lds")
        a(f"s_add_u32 s{sSO}, s{sSO}, s37")
    def aload(j):
        for s in range(4):
            ks = 4*j + s
            off = (ks % 4) * 1024
            a(f"global_load_dwordx4 v[{vA+4*ks}:{vA+4*ks+3}], v{vAo}, s[{sWS}:{sWS+1}] offset:{off}")
        a(f"v_add_u32 v{vAo}, 4096, v{vAo}")
    for j in range(6):
        dma(j); aload(j)
    aload(6); aload(7)
    vR = V.alloc(4)
    acc = [V.alloc(16, 2), V.alloc(16, 2)]
    for ch in range(2):
        for r in range(16): a(f"v_mov_b32 v{acc[ch]+r}, 0")
    fb = [[V.alloc(4, 2), V.alloc(4, 2)] for _ in range(2)]
    vx = V.alloc(8, 2); vd = V.alloc(8, 2); vg = V.alloc(2, 2)
    def eloads():
        a(f"""
        s_and_b32 s{sT1}, s{skg}, 1
        s_lshl_b32 s{sT1}, s{sT1}, 5
        s_lshl_b32 s{sT0}, s{sct}, 6
        s_add_u32 s38, s{sT0}, s{sT1}
        v_lshrrev_b32 v{t0}, 5, v1
        v_lshlrev_b32 v{t0}, 4, v{t0}
        v_add_u32 v{t0}, s38, v{t0}               ; n0
        v_and_b32 v{t1}, 31, v1
        s_lshl_b32 s{sT0}, s36, 5
        v_add_u32 v{t1}, s{sT0}, v{t1}            ; token
        v_lshlrev_b32 v{t2}, 1, v{t0}             ; n0*2
        v_lshl_add_u32 v{t3}, v{t1}, 10, v{t2}
        global_load_dwordx4 v[{vx}:{vx+3}], v{t3}, s[24:25]
        global_load_dwordx4 v[{vx+4}:{vx+7}], v{t3}, s[24:25] offset:16
        global_load_dwordx4 v[{vd}:{vd+3}], v{t2}, s[32:33]
        global_load_dwordx4 v[{vd+4}:{vd+7}], v{t2}, s[32:33] offset:16
        v_lshlrev_b32 v{t2}, 3, v{t1}
        v_add_u32 v{t2}, {WS_G}, v{t2}
        global_load_dwordx2 v[{vg}:{vg+1}], v{t2}, s[{sWS}:{sWS+1}]
        v_lshlrev_b32 v{t0}, 2, v{t0}
        v_lshl_add_u32 v{vAo}, v{t1}, 11, v{t0}
        """)
    waits = [48, 45, 41, 37, 29, 21, 4, 0]
    def mainloop(role, L):
        def reads(j, s, b):
            base = (j % 6) * K3_STG
            for ch in range(2):
                if role == 0:
                    for u in range(2):
                        a(f"ds_read_b64_tr_b16 v[{fb[b][ch]+2*u}:{fb[b][ch]+2*u+1}], v{vR+ch+ (2 if base >= 65536 - 8192 else 0)} offset:{(base if base < 65536 - 8192 else base - 73728) + 2048*s + 512*u}")
                else:
                    a(f"ds_read_b128 v[{fb[b][ch]}:{fb[b][ch]+3}], v{vRC[1 if base >= 65536 - 8192 else 0]+s} offset:{(base if base < 65536 - 8192 else base - 73728) + 4096*ch}")
        nrd = 4 if role == 0 else 2
        for j in range(8):
            a(f"s_waitcnt vmcnt({waits[j]})")
            a("s_barrier")
            reads(j, 0, 0)
            if j == 0: eloads()
            if j == 1: dma(6)
            if j == 2: dma(7)
            for s in range(4):
                b = s & 1
                if s < 3:
                    reads(j, s + 1, 1 - b)
                    a(f"s_waitcnt lgkmcnt({nrd})")
                else:
                    a("s_waitcnt lgkmcnt(0)")
                ks = 4*j + s
                for ch in range(2):
                    a(f"v_mfma_f32_32x32x16_bf16 {vr(acc[ch],16)}, {vr(fb[b][ch],4)}, v[{vA+4*ks}:{vA+4*ks+3}], {vr(acc[ch],16)}")
    vRC = [V.alloc(4), V.alloc(4)]
    a(f"""
    s_cmp_eq_u32 s{skg}, 0
    s_cbranch_scc0 L_k3_crole
    v_bfe_u32 v{t0}, v1, 2, 2               ; r
    v_lshrrev_b32 v{t1}, 5, v1              ; hk
    v_lshl_add_u32 v{t1}, v{t1}, 3, v{t0}
    v_lshlrev_b32 v{t1}, 7, v{t1}           ; (8hk+r)*128
    v_lshrrev_b32 v{t0}, 1, v{t0}           ; r>>1
    v_and_b32 v{t2}, 3, v1                  ; cq
    v_bfe_u32 v{t3}, v1, 4, 1               ; G&1
    v_lshl_add_u32 v{t2}, v{t3}, 2, v{t2}   ; mu
    v_and_b32 v{t3}, 1, v{t2}
    v_lshlrev_b32 v{t3}, 2, v{t3}
    v_lshrrev_b32 v{t2}, 1, v{t2}
    v_add_u32 v{t2}, v{t2}, v{t3}           ; sigma
    v_lshl_add_u32 v{t1}, v{t2}, 3, v{t1}
    v_lshl_add_u32 v{vR}, v{t0}, 6, v{t1}
    v_xor_b32 v{t0}, 1, v{t0}
    v_lshl_add_u32 v{vR+1}, v{t0}, 6, v{t1}
    v_add_u32 v{vR+2}, 73728, v{vR}
    v_add_u32 v{vR+3}, 73728, v{vR+1}
    """)
    mainloop(0, "L_k3_a")
    a("s_branch L_k3_red")
    a("L_k3_crole:")
    a(f"""
    v_and_b32 v{t0}, 31, v1                 ; m
    v_bfe_u32 v{t1}, v{t0}, 2, 1
    v_lshlrev_b32 v{t1}, 4, v{t1}
    v_bfe_u32 v{t2}, v{t0}, 3, 2
    v_lshl_add_u32 v{t1}, v{t2}, 2, v{t1}
    v_and_b32 v{t2}, 3, v{t0}
    v_add_u32 v{t1}, v{t1}, v{t2}           ; n_local
    v_bfe_u32 v{t2}, v{t1}, 1, 3            ; sw
    v_lshlrev_b32 v{t1}, 7, v{t1}
    s_lshl_b32 s{sT0}, s{skg}, 13
    v_add_u32 v{t1}, s{sT0}, v{t1}
    v_lshrrev_b32 v{t0}, 5, v1              ; hk
    """)
    for s in range(4):
        a(f"""
        v_or_b32 v{t3}, {2*s}, v{t0}
        v_xor_b32 v{t3}, v{t3}, v{t2}
        v_lshl_add_u32 v{vRC[0]+s}, v{t3}, 4, v{t1}
        v_add_u32 v{vRC[1]+s}, 73728, v{vRC[0]+s}
        """)
    mainloop(1, "L_k3_c")
    a("L_k3_red:")
    a(f"""
    s_nop 7
    s_nop 7
    s_barrier
    s_mul_i32 s{sT0}, s{stsub}, 24576
    s_lshl_b32 s{sT1}, s{skg}, 13
    s_add_u32 s{sT0}, s{sT0}, s{sT1}
    v_add_u32 v{t0}, s{sT0}, v{vL16o}
    s_cmp_eq_u32 s{skg}, 0
    s_cbranch_scc1 L_k3_w1
    """)
    for q in range(4):
        a(f"ds_write_b128 v{t0}, v[{acc[0]+4*q}:{acc[0]+4*q+3}] offset:{1024*q}")
    a(f"""
    s_cmp_eq_u32 s{skg}, 1
    s_cbranch_scc1 L_k3_wd
L_k3_w1:
    """)
    for q in range(4):
        a(f"ds_write_b128 v{t0}, v[{acc[1]+4*q}:{acc[1]+4*q+3}] offset:{4096 + 1024*q}")
    a(f"""
L_k3_wd:
    s_waitcnt lgkmcnt(0)
    s_barrier
    s_cmp_eq_u32 s{skg}, 2
    s_cbranch_scc1 {END}
    """)
    P = V.alloc(16, 2); Q = V.alloc(16, 2)
    a(f"""
    s_mul_i32 s{sT0}, s{stsub}, 24576
    v_add_u32 v{t0}, s{sT0}, v{vL16o}
    s_cmp_eq_u32 s{skg}, 0
    s_cbranch_scc0 L_k3_f1
    """)
    for q in range(4):
        a(f"ds_read_b128 v[{P+4*q}:{P+4*q+3}], v{t0} offset:{8192 + 1024*q}")
        a(f"ds_read_b128 v[{Q+4*q}:{Q+4*q+3}], v{t0} offset:{16384 + 1024*q}")
    a("s_waitcnt lgkmcnt(0)")
    for r in range(16):
        a(f"v_sub_f32 v{Q+r}, v{P+r}, v{Q+r}")
        a(f"v_mov_b32 v{P+r}, v{acc[0]+r}")
    a("s_branch L_k3_fin")
    a("L_k3_f1:")
    for q in range(4):
        a(f"ds_read_b128 v[{P+4*q}:{P+4*q+3}], v{t0} offset:{4096 + 1024*q}")
        a(f"ds_read_b128 v[{Q+4*q}:{Q+4*q+3}], v{t0} offset:{16384 + 4096 + 1024*q}")
    a("s_waitcnt lgkmcnt(0)")
    for r in range(16):
        a(f"v_sub_f32 v{Q+r}, v{acc[1]+r}, v{Q+r}")
    a("L_k3_fin:")
    u0, u1, u2, u3 = [V.alloc() for _ in range(4)]
    for j in range(8):
        a(f"""
        v_lshlrev_b32 v{u0}, 16, v{vx+j}
        v_and_b32 v{u1}, 0xffff0000, v{vx+j}
        v_lshlrev_b32 v{u2}, 16, v{vd+j}
        v_and_b32 v{u3}, 0xffff0000, v{vd+j}
        v_mul_f32 v{u0}, v{u0}, v{u2}
        v_mul_f32 v{u1}, v{u1}, v{u3}
        v_cvt_pk_bf16_f32 v{u0}, v{u0}, v{u1}
        v_and_b32 v{u1}, 0xffff0000, v{u0}
        v_lshlrev_b32 v{u0}, 16, v{u0}
        v_fma_f32 v{u0}, 2.0, v{Q+2*j}, v{u0}
        v_fma_f32 v{u1}, 2.0, v{Q+2*j+1}, v{u1}
        v_mul_f32 v{u0}, v{vg+1}, v{u0}
        v_mul_f32 v{u1}, v{vg+1}, v{u1}
        v_fma_f32 v{P+2*j}, v{vg}, v{P+2*j}, v{u0}
        v_fma_f32 v{P+2*j+1}, v{vg}, v{P+2*j+1}, v{u1}
        """)
    for q in range(4):
        a(f"global_store_dwordx4 v{vAo}, v[{P+4*q}:{P+4*q+3}], s[34:35] offset:{16*q}")
    a(f"{END}:")
    a("s_endpgm")
    return name, V.hi, L3_LDS
```

```python
import sys, os
sys.path.insert(0, os.path.dirname(os.path.abspath(__file__)))
from asmlib import *
import k1 as K1, k2 as K2, k3 as K3
NAME = "gated_mix__mha_block__ssm_conv_s5__prompt"
HDR = open("cdna_kernels/%s.s.ref" % NAME).read().split("; Override launch geometry")[0]

def build(out, **opt):
    a = Asm()
    descs = []
    launches = []
    n1, v1, l1 = K1.k1(a); descs.append(kernel_desc(n1, v1)); launches.append((n1, 256, 512, l1))
    n2, v2, l2 = K2.k2(a, **opt.get("k2", {})); descs.append(kernel_desc(n2, v2)); launches.append((n2, 256, 512, l2))
    n3, v3, l3 = K3.k3(a); descs.append(kernel_desc(n3, v3)); launches.append((n3, 256, 384, l3))
    s = HDR
    for n, g, b, l in launches:
        s += f"; @launch kernel={n} grid=({g},1,1) block=({b},1,1) lds={l}\n"
    s += '.amdgcn_target "amdgcn-amd-amdhsa--gfx950"\n.text\n'
    s += a.text()
    s += ".fill 64, 4, 0xBF800000\n" if False else ""
    s += '.section .rodata,"a"\n.p2align 6\n'
    s += ".p2align 6\n".join(descs)
    open(out, "w").write(s)
    return launches

if __name__ == "__main__":
    out = sys.argv[1] if len(sys.argv) > 1 else f"cdna_kernels/{NAME}.s"
    print(build(out))
```

```python
import sys, re
sys.path.insert(0, "gen")
import build
NAME = build.NAME
base = "var_base.s"
L = build.build(base, k1={'xmap': 'R8'})
s = open(base).read()
lines = s.split("\n")
li = [i for i, l in enumerate(lines) if l.startswith("; @launch")]
l1, l2, l3 = [lines[i] for i in li]
dummy = "; @launch kernel=kd_kernel grid=(1,1,1) block=(64,1,1) lds=0"
def mk(name, seq):
    t = lines[:li[0]] + seq + lines[li[-1]+1:]
    t = "\n".join(t)
    if dummy in seq:
        t = t.replace('.section .rodata,"a"', '.globl kd_kernel\n.p2align 8\n.type kd_kernel,@function\nkd_kernel:\n    s_endpgm\n.section .rodata,"a"')
        t += """.p2align 6
.amdhsa_kernel kd_kernel
  .amdhsa_next_free_vgpr 8
  .amdhsa_next_free_sgpr 16
  .amdhsa_accum_offset 8
  .amdhsa_group_segment_fixed_size 0
  .amdhsa_kernarg_size 128
  .amdhsa_user_sgpr_count 2
  .amdhsa_user_sgpr_kernarg_segment_ptr 1
  .amdhsa_system_sgpr_workgroup_id_x 1
.end_amdhsa_kernel
"""
    open(f"cdna_kernels/{name}.s", "w").write(t)
mk("var_d1", [l1, l2, l3, dummy])
mk("var_d0", [dummy, l1, l2, l3])
mk("var_112", [l1, l1, l2, l3])
mk("var_122", [l1, l2, l2, l3])
mk("var_133", [l1, l2, l3, l3])
```

```python
class Asm:
    def __init__(self):
        self.lines = []
        self.uid = 0
    def __call__(self, s=""):
        for ln in s.split("\n"):
            ln = ln.strip()
            if not ln: continue
            if ln.endswith(":") or ln.startswith("."):
                self.lines.append(ln)
            else:
                self.lines.append("    " + ln)
    def c(self, s):
        self.lines.append("    ; " + s)
    def label(self, base):
        self.uid += 1
        return f"L_{base}_{self.uid}"
    def text(self):
        return "\n".join(self.lines) + "\n"

def vr(b, n=1):
    return f"v{b}" if n == 1 else f"v[{b}:{b+n-1}]"
def sr(b, n=1):
    return f"s{b}" if n == 1 else f"s[{b}:{b+n-1}]"

class Regs:
    def __init__(self, start, limit, name):
        self.n = start; self.limit = limit; self.name = name; self.hi = start
    def alloc(self, n=1, align=1):
        if n >= 2: align = max(align, 2)
        self.n = (self.n + align - 1) // align * align
        r = self.n; self.n += n
        assert self.n <= self.limit, f"{self.name} overflow"
        self.hi = max(self.hi, self.n)
        return r
    def mark(self): return self.n
    def release(self, m): self.n = m

def kernel_header(name):
    return f""".globl {name}
.p2align 8
.type {name},@function
{name}:
"""
def kernel_desc(name, vgprs, sgprs=96, accum=None, denorm=3):
    v = (vgprs + 7) // 8 * 8
    acc = accum if accum is not None else (v + 3) // 4 * 4
    return f""".amdhsa_kernel {name}
  .amdhsa_next_free_vgpr {v}
  .amdhsa_next_free_sgpr {sgprs}
  .amdhsa_accum_offset {acc}
  .amdhsa_group_segment_fixed_size 0
  .amdhsa_kernarg_size 128
  .amdhsa_user_sgpr_count 2
  .amdhsa_user_sgpr_kernarg_segment_ptr 1
  .amdhsa_system_sgpr_workgroup_id_x 1
  .amdhsa_float_denorm_mode_32 {denorm}
.end_amdhsa_kernel
"""

STAMP_WS = 0x2000000
class Stamps:
    def __init__(self, a, on, kid, base=66):
        self.a = a; self.on = on; self.kid = kid; self.base = base; self.n = 0
    def stamp(self, real=False):
        if not self.on: return
        self.a(f"s_memtime s[{self.base+2*self.n}:{self.base+2*self.n+1}]")
        self.n += 1
    def flush(self, sWS, sw8, wpw, nmax=12):
        if not self.on: return
        a = self.a
        a("s_waitcnt lgkmcnt(0)")
        a(f"s_mul_i32 s62, s2, {wpw}")
        a(f"s_add_u32 s62, s62, s{sw8}")
        a("s_lshl_b32 s62, s62, 6")
        a(f"s_add_u32 s62, s62, {STAMP_WS + self.kid * 0x100000}")
        a("v_mov_b32 v2, s62")
        for i in range(nmax):
            a(f"v_mov_b32 v3, s{self.base+2*i}")
            a(f"global_store_dword v2, v3, s[{sWS}:{sWS+1}] offset:{4*i}")
            a("s_nop 1")

def rt_stamp(a, on, kid, which, sgpr_tmp=80):
    if not on: return
    t = sgpr_tmp
    a.uid += 1
    lab = f"L_rt_{a.uid}"
    a(f"s_and_b32 s{t}, s2, 31")
    a(f"s_cmp_eq_u32 s{t}, 0")
    a(f"s_cbranch_scc0 {lab}")
    a(f"s_load_dwordx2 s[{t+2}:{t+3}], s[0:1], 112")
    a(f"s_memrealtime s[{t+4}:{t+5}]")
    a("s_waitcnt lgkmcnt(0)")
    if kid:
        a(f"s_sub_u32 s{t+2}, s{t+2}, {512*kid}")
        a(f"s_subb_u32 s{t+3}, s{t+3}, 0")
    if which % 2 == 0:
        a(f"s_not_b32 s{t+4}, s{t+4}")
    a(f"v_mov_b32 v2, {4*(kid*4+which)}")
    a(f"v_mov_b32 v3, s{t+4}")
    a(f"v_cmp_eq_u32 vcc, 0, v0")
    a(f"s_and_saveexec_b64 s[{t+6}:{t+7}], vcc")
    a(f"s_cbranch_execz {lab}_x")
    a(f"global_atomic_umax v2, v3, s[{t+2}:{t+3}]")
    a(f"{lab}_x:")
    a(f"s_mov_b64 exec, s[{t+6}:{t+7}]")
    a(f"{lab}:")

def code_prefetch(a, vtmp, vdum, first, last, nins, stmp=60):
    a.uid += 1
    L = f"L_cp_{a.uid}"
    a(f"s_getpc_b64 s[{stmp}:{stmp+1}]")
    a(f"{L}:")
    a(f"s_add_u32 s{stmp}, s{stmp}, {first}-{L}")
    a(f"s_addc_u32 s{stmp+1}, s{stmp+1}, 0" if False else f"s_addc_u32 s{stmp+1}, s{stmp+1}, 0-((({first}-{L})>>63)&1)")
    for j in range(nins):
        a(f"v_lshlrev_b32 v{vtmp}, 7, v1")
        if j: a(f"v_add_u32 v{vtmp}, {8192*j}, v{vtmp}")
        a(f"v_min_u32 v{vtmp}, {last}-{first}-4, v{vtmp}")
        a(f"global_load_dword v{vdum}, v{vtmp}, s[{stmp}:{stmp+1}]")
```

```python
import sys, os
sys.path.insert(0, os.path.dirname(os.path.abspath(__file__)))
from asmlib import *
import k1 as K1, k2 as K2, k3 as K3
NAME = "gated_mix__mha_block__ssm_conv_s5__prompt"
HDR = open("cdna_kernels/%s.s.ref" % NAME).read().split("; Override launch geometry")[0]

def build(out, **opt):
    a = Asm()
    descs = []
    launches = []
    n1, v1, l1 = K1.k1(a, **opt.get('k1', {})); descs.append(kernel_desc(n1, v1)); launches.append((n1, 256, 768, l1))
    n2, v2, l2 = K2.k2(a, **opt.get("k2", {})); descs.append(kernel_desc(n2, v2, denorm=opt.get('denorm2', 3))); launches.append((n2, 256, 768, l2))
    n3, v3, l3 = K3.k3(a, **opt.get('k3', {})); descs.append(kernel_desc(n3, v3)); launches.append((n3, 256, 640, l3))
    s = HDR
    for n, g, b, l in launches:
        s += f"; @launch kernel={n} grid=({g},1,1) block=({b},1,1) lds={l}\n"
    s += '.amdgcn_target "amdgcn-amd-amdhsa--gfx950"\n.text\n'
    a("L_text_end:")
    s += a.text()
    s += ".fill 64, 4, 0xBF800000\n" if False else ""
    s += '.section .rodata,"a"\n.p2align 6\n'
    s += ".p2align 6\n".join(descs)
    open(out, "w").write(s)
    return launches

if __name__ == "__main__":
    out = sys.argv[1] if len(sys.argv) > 1 else f"cdna_kernels/{NAME}.s"
    print(build(out))
```

```python
from asmlib import *

WS_QF  = 0x000000
WS_KF  = 0x200000
WS_VF  = 0x400000
WS_HL  = 0x600000
WS_CS  = 0xA00000
WS_EP  = 0xA80000
WS_PAR = 0xA90000
WS_G   = 0xA94000
WS_AF  = 0xB00000
LOG2E = 1.4426950408889634
import struct
def f2u(x): return "0x%08x" % struct.unpack("<I", struct.pack("<f", x))[0]

STAGE = 36864
NS1 = 4
L1_LDS = 4 * STAGE + 2048

def srd(a, s, lo, hi, nbytes):
    a(f"s_mov_b32 s{s}, s{lo}")
    a(f"s_and_b32 s{s+1}, s{hi}, 0xffff")
    a(f"s_mov_b32 s{s+2}, {hex(nbytes)}")
    a(f"s_mov_b32 s{s+3}, 0x20000")

def cmul_sq(a, dr, di, sr_, si, t):
    a(f"v_mul_f32 v{t}, v{si}, v{si}")
    a(f"v_fma_f32 v{dr}, v{sr_}, v{sr_}, -v{t}")
    a(f"v_add_f32 v{t}, v{sr_}, v{sr_}")
    a(f"v_mul_f32 v{di}, v{t}, v{si}")

def k1(a, stamps=False, rt=False, stagger=True, xmap="R16", kahead=4, cpf=False):
    name = "k1_kernel"
    a(kernel_header(name))
    END = "L_k1_end"
    sX, sW, sBR, sBI = 28, 32, 36, 40
    sw8, sxcd, si, sc, sR = 22, 23, 24, 25, 26
    sWS = 20
    sIT, sSLOT, sKX, sKW, sRD, sT0, sT1, sM0X, sM0W = 44, 45, 46, 47, 48, 49, 50, 51, 52
    sDELTA, sTG, sCH = 53, 54, 55
    a(f"""
    s_cmp_ge_u32 s2, 256
    s_cbranch_scc1 {END}
    s_load_dwordx4 s[4:7], s[0:1], 0
    s_load_dwordx8 s[8:15], s[0:1], 32
    s_load_dwordx2 s[16:17], s[0:1], 80
    s_load_dwordx2 s[18:19], s[0:1], 96
    s_load_dwordx2 s[20:21], s[0:1], 120
    v_lshrrev_b32 v2, 6, v0
    v_and_b32 v1, 63, v0
    s_and_b32 s{sxcd}, s2, 7
    v_readfirstlane_b32 s{sw8}, v2
    s_lshr_b32 s{si}, s2, 3
    """)
    if xmap == "R16":
        a(f"""
        s_and_b32 s{sc}, s{si}, 1
        s_lshl_b32 s{sT0}, s{sxcd}, 1
        s_add_u32 s{sc}, s{sc}, s{sT0}
        s_lshr_b32 s{sR}, s{si}, 1
        """)
    else:
        a(f"""
        s_and_b32 s{sR}, s{sxcd}, 1
        s_lshl_b32 s{sR}, s{sR}, 3
        s_and_b32 s{sT0}, s{si}, 7
        s_add_u32 s{sR}, s{sR}, s{sT0}
        s_lshr_b32 s{sc}, s{sxcd}, 1
        s_lshl_b32 s{sc}, s{sc}, 2
        s_lshr_b32 s{sT0}, s{si}, 3
        s_add_u32 s{sc}, s{sc}, s{sT0}
        """)
    st = Stamps(a, stamps, 0)
    st.stamp()
    rt_stamp(a, rt, 0, 0)
    V = Regs(3, 160, "k1 vgpr")
    t0, t1, t2, t3 = V.alloc(), V.alloc(), V.alloc(), V.alloc()
    a(f"s_cmp_lt_u32 s{sw8}, 8")
    a("s_cbranch_scc1 L_k1_compute")
    mL = V.mark()
    vXe, vXo, vW, vB = [V.alloc() for _ in range(4)]
    a(f"""
    s_sub_u32 s{sT1}, s{sw8}, 8                 ; j
    v_lshrrev_b32 v{t0}, 5, v1
    v_lshlrev_b32 v{t0}, 4, v{t0}
    v_bfe_u32 v{t1}, v1, 3, 2
    v_add_u32 v{t0}, v{t0}, v{t1}
    s_lshl_b32 s{sT0}, s{sR}, 2
    s_add_u32 s{sT0}, s{sT0}, s{sT1}
    s_lshl_b32 s{sT0}, s{sT0}, 5
    v_add_u32 v{t0}, s{sT0}, v{t0}              ; token
    v_bfe_u32 v{t1}, v1, 4, 2
    v_and_b32 v{t2}, 7, v1
    v_xor_b32 v{t1}, v{t1}, v{t2}
    v_lshlrev_b32 v{t1}, 4, v{t1}
    v_lshl_add_u32 v{vXe}, v{t0}, 10, v{t1}
    v_xor_b32 v{vXo}, 64, v{vXe}
    v_lshrrev_b32 v{t0}, 2, v1
    s_lshl_b32 s{sT0}, s{sT1}, 4
    v_add_u32 v{t0}, s{sT0}, v{t0}
    v_mul_u32_u24 v{t0}, 3072, v{t0}
    v_and_b32 v{t1}, 3, v1
    v_lshl_add_u32 v{t0}, v{t1}, 4, v{t0}
    s_lshl_b32 s{sT0}, s{sc}, 6
    v_add_u32 v{vW}, s{sT0}, v{t0}
    v_lshrrev_b32 v{t0}, 3, v1
    s_lshl_b32 s{sT0}, s{sT1}, 3
    v_add_u32 v{t0}, s{sT0}, v{t0}
    v_bfe_u32 v{t1}, v{t0}, 1, 3
    v_and_b32 v{t2}, 7, v1
    v_xor_b32 v{t1}, v{t1}, v{t2}
    v_lshlrev_b32 v{t1}, 4, v{t1}
    s_lshl_b32 s{sT0}, s{sc}, 5
    v_add_u32 v{t0}, s{sT0}, v{t0}
    v_lshl_add_u32 v{vB}, v{t0}, 10, v{t1}
    s_lshl_b32 s{sM0X}, s{sT1}, 12              ; j*4096
    s_lshl_b32 s{sM0W}, s{sT1}, 10              ; j*1024
    s_mov_b32 s{sSLOT}, 0
    """)
    if stagger:
        a(f"s_add_u32 s{sCH}, s{sR}, s{sc}")
        a(f"s_and_b32 s{sCH}, s{sCH}, 7")
    else:
        a(f"s_mov_b32 s{sCH}, 0")
    a("s_waitcnt lgkmcnt(0)")
    srd(a, sX, 4, 5, 0x200000)
    srd(a, sW, 6, 7, 0x180000)
    srd(a, sBR, 12, 13, 0x80000)
    srd(a, sBI, 14, 15, 0x80000)
    def issue_setup():
        a(f"""
        s_lshl_b32 s{sKX}, s{sCH}, 7
        s_mul_i32 s{sKW}, s{sCH}, {64*3072}
        s_add_u32 s60, s{sSLOT}, s{sM0X}
        s_add_u32 s61, s{sSLOT}, s{sM0W}
        s_add_u32 s{sCH}, s{sCH}, 1
        s_and_b32 s{sCH}, s{sCH}, 7
        s_add_u32 s{sSLOT}, s{sSLOT}, {STAGE}
        s_cmp_eq_u32 s{sSLOT}, {NS1*STAGE}
        s_cselect_b32 s{sSLOT}, 0, s{sSLOT}
        """)
    def issue_part(lo, hi):
        ins = []
        for q in range(4):
            ins.append([f"s_add_u32 m0, s60, {1024*q}", f"s_add_u32 s{sT1}, s{sKX}, {4096*q}",
                        f"buffer_load_dwordx4 v{vXo if q & 1 else vXe}, s[{sX}:{sX+3}], s{sT1} offen lds"])
        for t in range(3):
            ins.append([f"s_add_u32 m0, s61, {16384 + 4096*t}", f"s_add_u32 s{sT1}, s{sKW}, {1024*t}",
                        f"buffer_load_dwordx4 v{vW}, s[{sW}:{sW+3}], s{sT1} offen lds"])
        for m, sb in enumerate((sBR, sBI)):
            ins.append([f"s_add_u32 m0, s61, {28672 + 4096*m}", "s_nop 0",
                        f"buffer_load_dwordx4 v{vB}, s[{sb}:{sb+3}], s{sKX} offen lds"])
        for g in ins[lo:hi]:
            for l in g: a(l)
    n = 9
    k = kahead
    issue_setup(); issue_part(0, n)
    issue_setup(); issue_part(0, k)
    a(f"s_waitcnt vmcnt({k})")
    a("s_barrier")
    a(f"s_mov_b32 s{sIT}, 1")
    a("L_k1_lloop:")
    issue_part(k, n)
    issue_setup(); issue_part(0, k)
    a(f"""
    s_waitcnt vmcnt({k})
    s_barrier
    s_add_u32 s{sIT}, s{sIT}, 1
    s_cmp_lt_u32 s{sIT}, 7
    s_cbranch_scc1 L_k1_lloop
    """)
    issue_part(k, n)
    a(f"""
    s_waitcnt vmcnt(0)
    s_barrier
    s_endpgm
    """)
    V.release(mL)
    a("L_k1_compute:")
    vGx, vGw = V.alloc(4, 2), V.alloc(4, 2)
    vP = V.alloc(3)
    a(f"""
    s_lshl_b32 s{sTG}, s{sR}, 7
    s_lshl_b32 s{sT0}, s{sc}, 3
    s_add_u32 s{sTG}, s{sTG}, s{sT0}
    s_add_u32 s{sTG}, s{sTG}, s{sw8}
    s_lshl_b32 s{sT0}, s{sTG}, 10
    v_lshlrev_b32 v{t0}, 4, v1
    v_add_u32 v{t1}, s{sT0}, v{t0}
    v_and_b32 v{t2}, 31, v1
    s_lshl_b32 s{sT0}, s{sc}, 5
    v_add_u32 v{t2}, s{sT0}, v{t2}
    v_lshlrev_b32 v{t2}, 1, v{t2}
    s_waitcnt lgkmcnt(0)
    global_load_dwordx4 {vr(vGx,4)}, v{t1}, s[4:5]
    global_load_dwordx4 {vr(vGw,4)}, v{t0}, s[18:19]
    global_load_ushort v{vP}, v{t2}, s[8:9]
    global_load_ushort v{vP+1}, v{t2}, s[10:11]
    global_load_ushort v{vP+2}, v{t2}, s[16:17]
    """)
    if cpf:
        vcd = V.alloc()
        code_prefetch(a, t3, vcd, "k1_kernel", "L_text_end", 2)
    def gate():
        m = V.mark()
        p0 = V.alloc(2, 2); p1 = p0 + 1
        acc, xa, xb, wa, wb = [V.alloc() for _ in range(5)]
        a("s_waitcnt vmcnt(0)")
        a(f"v_mov_b32 v{acc}, 0")
        for d in range(4):
            a(f"""
            v_lshlrev_b32 v{xa}, 16, v{vGx+d}
            v_lshlrev_b32 v{wa}, 16, v{vGw+d}
            v_and_b32 v{xb}, 0xffff0000, v{vGx+d}
            v_and_b32 v{p1}, 0xffff0000, v{vGw+d}
            v_mul_f32 v{p0}, v{xa}, v{wa}
            v_mul_f32 v{p1}, v{xb}, v{p1}
            v_cvt_pk_bf16_f32 v{p0}, v{p0}, v{p1}
            v_lshlrev_b32 v{p1}, 16, v{p0}
            v_and_b32 v{p0}, 0xffff0000, v{p0}
            v_add_f32 v{acc}, v{acc}, v{p1}
            v_add_f32 v{acc}, v{acc}, v{p0}
            """)
        for sh in (8, 4, 2, 1):
            a("s_nop 1")
            a(f"v_add_f32_dpp v{acc}, v{acc}, v{acc} row_ror:{sh} row_mask:0xf bank_mask:0xf")
        a(f"""
        s_nop 1
        v_readlane_b32 s{sT0}, v{acc}, 0
        v_readlane_b32 s{sT1}, v{acc}, 16
        v_readlane_b32 s56, v{acc}, 32
        v_readlane_b32 s57, v{acc}, 48
        s_nop 1
        v_mov_b32 v{acc}, s{sT0}
        v_add_f32 v{acc}, s{sT1}, v{acc}
        v_add_f32 v{acc}, s56, v{acc}
        v_add_f32 v{acc}, s57, v{acc}
        v_cvt_pk_bf16_f32 v{acc}, v{acc}, v{acc}
        v_and_b32 v{acc}, 0xffff0000, v{acc}
        v_mul_f32 v{acc}, {f2u(-LOG2E)}, v{acc}
        v_exp_f32 v{acc}, v{acc}
        s_nop 0
        v_add_f32 v{acc}, 1.0, v{acc}
        v_rcp_f32 v{acc}, v{acc}
        s_nop 0
        v_cvt_pk_bf16_f32 v{acc}, v{acc}, v{acc}
        v_and_b32 v{p0}, 0xffff0000, v{acc}
        v_sub_f32 v{p1}, 1.0, v{p0}
        v_cvt_pk_bf16_f32 v{p1}, v{p1}, v{p1}
        v_and_b32 v{p1}, 0xffff0000, v{p1}
        s_lshl_b32 s{sT0}, s{sTG}, 3
        s_add_u32 s{sT0}, s{sT0}, {WS_G}
        v_mov_b32 v{xa}, s{sT0}
        v_cmp_eq_u32 vcc, 0, v1
        s_and_saveexec_b64 s[56:57], vcc
        global_store_dwordx2 v{xa}, v[{p0}:{p1}], s[{sWS}:{sWS+1}]
        s_mov_b64 exec, s[56:57]
        """)
        V.release(m)
    vF = V.alloc(4); vG = V.alloc(4)
    def frag_addr_common():
        a(f"""
        v_and_b32 v{t0}, 31, v1
        v_lshrrev_b32 v{t1}, 5, v1
        v_bfe_u32 v{t2}, v{t0}, 1, 3
        v_lshlrev_b32 v{t0}, 7, v{t0}
        """)
        for s in range(4):
            a(f"""
            v_or_b32 v{t3}, {2*s}, v{t1}
            v_xor_b32 v{t3}, v{t3}, v{t2}
            v_lshl_add_u32 v{vF+s}, v{t3}, 4, v{t0}
            """)
    a(f"s_cmp_ge_u32 s{sw8}, 4")
    a("s_cbranch_scc1 L_k1_ssm")
    for role in (0, 1):
        L = f"L_k1_r{role}"
        if role == 1: a("L_k1_ssm:")
        m0 = V.mark()
        frag_addr_common()
        a(f"s_and_b32 s{sT1}, s{sw8}, 3")
        a(f"s_lshl_b32 s{sT0}, s{sT1}, 12")
        if role == 1:
            for s in range(4): a(f"v_mov_b32 v{vG+s}, v{vF+s}")
        for s in range(4): a(f"v_add_u32 v{vF+s}, s{sT0}, v{vF+s}")
        if role == 0:
            a(f"""
            v_bfe_u32 v{t0}, v1, 2, 2
            v_lshrrev_b32 v{t1}, 5, v1
            v_lshl_add_u32 v{t0}, v{t1}, 3, v{t0}
            v_lshlrev_b32 v{t0}, 6, v{t0}
            v_add_u32 v{t0}, 16384, v{t0}
            v_and_b32 v{t1}, 3, v1
            v_bfe_u32 v{t2}, v1, 4, 1
            v_lshl_add_u32 v{t1}, v{t2}, 2, v{t1}
            v_lshl_add_u32 v{vG+1}, v{t1}, 3, v{t0}
            v_and_b32 v{t2}, 4, v{t1}
            v_bfe_u32 v{t3}, v{t1}, 1, 1
            v_or_b32 v{t2}, v{t2}, v{t3}
            v_and_b32 v{t3}, 1, v{t1}
            v_lshl_or_b32 v{t2}, v{t3}, 1, v{t2}
            v_lshl_add_u32 v{vG}, v{t2}, 3, v{t0}
            """)
        nacc = 3 if role == 0 else 2
        vA = [V.alloc(16, 2) for _ in range(nacc)]
        for g in range(nacc):
            for r in range(16): a(f"v_mov_b32 v{vA[g]+r}, 0")
        gate()
        if role == 1:
            vLr = V.alloc(2, 2); vLi = vLr + 1; vCr = V.alloc(2, 2); vCi = vCr + 1
            vL16 = V.alloc(2, 2); vL128 = V.alloc(2, 2)
            mq = V.mark()
            q0, q1, q2, q3, q4 = [V.alloc() for _ in range(5)]
            a(f"""
            v_lshlrev_b32 v{vP}, 16, v{vP}
            v_lshlrev_b32 v{vP+1}, 16, v{vP+1}
            v_lshlrev_b32 v{vP+2}, 16, v{vP+2}
            v_mul_f32 v{q0}, {f2u(LOG2E)}, v{vP+2}
            v_exp_f32 v{q0}, v{q0}
            s_nop 0
            v_cvt_pk_bf16_f32 v{q0}, v{q0}, v{q0}
            v_and_b32 v{q0}, 0xffff0000, v{q0}
            v_mul_f32 v{q1}, v{q0}, v{vP}
            v_mul_f32 v{q2}, v{q0}, v{vP+1}
            v_mul_f32 v{q1}, {f2u(LOG2E)}, v{q1}
            v_exp_f32 v{q1}, v{q1}
            v_mul_f32 v{q2}, 0.15915494, v{q2}
            v_rndne_f32 v{q3}, v{q2}
            v_sub_f32 v{q2}, v{q2}, v{q3}
            v_cos_f32 v{q3}, v{q2}
            v_sin_f32 v{q4}, v{q2}
            s_nop 0
            v_mul_f32 v{vLr}, v{q1}, v{q3}
            v_mul_f32 v{vLi}, v{q1}, v{q4}
            v_add_f32 v{q0}, -1.0, v{vLr}
            v_mul_f32 v{q1}, v{vP}, v{vP}
            v_fma_f32 v{q1}, v{vP+1}, v{vP+1}, v{q1}
            v_rcp_f32 v{q1}, v{q1}
            v_mul_f32 v{q2}, v{q0}, v{vP}
            v_fma_f32 v{q2}, v{vLi}, v{vP+1}, v{q2}
            v_mul_f32 v{q3}, v{vLi}, v{vP}
            v_fma_f32 v{q3}, -v{q0}, v{vP+1}, v{q3}
            v_mul_f32 v{vCr}, v{q2}, v{q1}
            v_mul_f32 v{vCi}, v{q3}, v{q1}
            """)
            cmul_sq(a, q0, q1, vLr, vLi, q4)
            cmul_sq(a, q2, q3, q0, q1, q4)
            cmul_sq(a, q0, q1, q2, q3, q4)
            cmul_sq(a, vL16, vL16+1, q0, q1, q4)
            cmul_sq(a, q0, q1, vL16, vL16+1, q4)
            cmul_sq(a, q2, q3, q0, q1, q4)
            cmul_sq(a, vL128, vL128+1, q2, q3, q4)
            a(f"""
            s_cmp_eq_u32 s{sR}, 0
            s_cselect_b32 s{sT0}, s{sw8}, 0
            s_cmp_eq_u32 s{sT0}, 4
            s_cbranch_scc0 L_k1_nopar
            v_and_b32 v{q0}, 31, v1
            s_lshl_b32 s{sT0}, s{sc}, 5
            v_add_u32 v{q0}, s{sT0}, v{q0}
            v_lshlrev_b32 v{q0}, 5, v{q0}
            v_add_u32 v{q0}, {WS_PAR}, v{q0}
            v_cmp_gt_u32 vcc, 32, v1
            s_and_saveexec_b64 s[56:57], vcc
            global_store_dwordx2 v{q0}, v[{vLr}:{vLr+1}], s[{sWS}:{sWS+1}]
            global_store_dwordx2 v{q0}, v[{vL16}:{vL16+1}], s[{sWS}:{sWS+1}] offset:8
            global_store_dwordx2 v{q0}, v[{vL128}:{vL128+1}], s[{sWS}:{sWS+1}] offset:16
            s_mov_b64 exec, s[56:57]
L_k1_nopar:
            """)
            V.release(mq)
        mfr = V.mark()
        vx = [V.alloc(4, 2), V.alloc(4, 2)]
        nw = 3 if role == 0 else 2
        vw = [[V.alloc(4, 2) for _ in range(nw)] for _ in range(2)]
        def reads(s, b):
            a(f"ds_read_b128 {vr(vx[b],4)}, v{vF+s}")
            if role == 0:
                for t in range(3):
                    for u in range(2):
                        ad = vG + (1 if t == 2 else 0)
                        a(f"ds_read_b64_tr_b16 v[{vw[b][t]+2*u}:{vw[b][t]+2*u+1}], v{ad} offset:{4096*t + 1024*s + 256*u}")
            else:
                for m in range(2):
                    a(f"ds_read_b128 {vr(vw[b][m],4)}, v{vG+s} offset:{28672 + 4096*m}")
        nrd = 7 if role == 0 else 3
        def mfmas(b):
            if role == 0:
                a(f"v_mfma_f32_32x32x16_bf16 {vr(vA[0],16)}, {vr(vw[b][0],4)}, {vr(vx[b],4)}, {vr(vA[0],16)}")
                a(f"v_mfma_f32_32x32x16_bf16 {vr(vA[1],16)}, {vr(vw[b][1],4)}, {vr(vx[b],4)}, {vr(vA[1],16)}")
                a(f"v_mfma_f32_32x32x16_bf16 {vr(vA[2],16)}, {vr(vx[b],4)}, {vr(vw[b][2],4)}, {vr(vA[2],16)}")
            else:
                for m in range(2):
                    a(f"v_mfma_f32_32x32x16_bf16 {vr(vA[m],16)}, {vr(vx[b],4)}, {vr(vw[b][m],4)}, {vr(vA[m],16)}")
        st.n = 1; st.stamp()
        a(f"""
        s_mov_b32 s{sIT}, 0
        s_mov_b32 s{sRD}, 0
        s_mov_b32 s59, {-3*STAGE & 0xffffffff:#x}
        s_barrier
        """)
        st.stamp()
        reads(0, 0)
        a(f"{L}_loop:")
        for s in range(3):
            b = s & 1
            reads(s + 1, 1 - b)
            a(f"s_waitcnt lgkmcnt({nrd})")
            mfmas(b)
        a(f"""
        s_add_u32 s{sRD}, s{sRD}, 1
        s_cmp_eq_u32 s{sRD}, 4
        s_cselect_b32 s{sDELTA}, s59, {STAGE}
        s_cselect_b32 s{sRD}, 0, s{sRD}
        """)
        for s in range(4): a(f"v_add_u32 v{vF+s}, s{sDELTA}, v{vF+s}")
        for s in range(2 if role == 0 else 4): a(f"v_add_u32 v{vG+s}, s{sDELTA}, v{vG+s}")
        a(f"""
        s_add_u32 s{sIT}, s{sIT}, 1
        s_cmp_lt_u32 s{sIT}, 8
        s_waitcnt lgkmcnt(0)
        s_cbranch_scc0 {L}_last
        s_barrier
        """)
        reads(0, 0)
        mfmas(1)
        a(f"s_branch {L}_loop")
        a(f"{L}_last:")
        mfmas(1)
        a("s_nop 7")
        a("s_nop 7")
        st.stamp()
        V.release(mfr)
        if role == 0:
            o0, o1, o2 = V.alloc(), V.alloc(), V.alloc()
            pk = V.alloc(8, 2)
            a(f"""
            s_and_b32 s{sT1}, s{sw8}, 3
            s_lshl_b32 s{sT0}, s{sR}, 2
            s_add_u32 s{sT0}, s{sT0}, s{sT1}        ; tt32
            s_lshl_b32 s{sT0}, s{sT0}, 10           ; *1024
            s_lshl_b32 s{sT1}, s{sc}, 17            ; head 2c * 65536
            s_add_u32 s{sT0}, s{sT0}, s{sT1}
            v_and_b32 v{t0}, 31, v1                 ; a
            v_lshrrev_b32 v{t1}, 5, v1              ; hk
            v_lshlrev_b32 v{t1}, 9, v{t1}           ; hk*512
            v_bfe_u32 v{t2}, v{t0}, 2, 1
            v_lshlrev_b32 v{t2}, 4, v{t2}
            v_bfe_u32 v{t3}, v{t0}, 3, 2
            v_lshl_add_u32 v{t2}, v{t3}, 2, v{t2}
            v_and_b32 v{t3}, 3, v{t0}
            v_add_u32 v{t2}, v{t2}, v{t3}
            v_lshl_add_u32 v{o0}, v{t2}, 4, v{t1}
            v_add_u32 v{o0}, s{sT0}, v{o0}
            v_and_b32 v{t2}, 0x13, v{t0}
            v_bfe_u32 v{t3}, v{t0}, 2, 1
            v_lshl_or_b32 v{t2}, v{t3}, 3, v{t2}
            v_bfe_u32 v{t3}, v{t0}, 3, 1
            v_lshl_or_b32 v{t2}, v{t3}, 2, v{t2}
            v_lshl_add_u32 v{o1}, v{t2}, 4, v{t1}
            v_add_u32 v{o1}, s{sT0}, v{o1}
            v_add_u32 v{o1}, {WS_KF}, v{o1}
            v_bfe_u32 v{t2}, v{t0}, 2, 1
            v_lshlrev_b32 v{t2}, 3, v{t2}
            v_bfe_u32 v{t3}, v{t0}, 3, 1
            v_lshl_or_b32 v{t2}, v{t3}, 2, v{t2}
            v_and_b32 v{t3}, 3, v{t0}
            v_or_b32 v{t2}, v{t2}, v{t3}            ; m
            v_lshlrev_b32 v{t2}, 4, v{t2}
            v_lshrrev_b32 v{t3}, 1, v{t1}           ; h*256
            v_add_u32 v{t2}, v{t2}, v{t3}
            v_lshrrev_b32 v{t3}, 4, v{t0}
            v_lshl_add_u32 v{t2}, v{t3}, 16, v{t2}
            v_add_u32 v{o2}, s{sT0}, v{t2}
            v_add_u32 v{o2}, {WS_VF}, v{o2}
            s_mov_b32 s{sT0}, {f2u(0.25*LOG2E)}
            """)
            for r in range(16): a(f"v_mul_f32 v{vA[0]+r}, s{sT0}, v{vA[0]+r}")
            for j in range(8): a(f"v_cvt_pk_bf16_f32 v{pk+j}, v{vA[0]+2*j}, v{vA[0]+2*j+1}")
            a(f"global_store_dwordx4 v{o0}, v[{pk}:{pk+3}], s[{sWS}:{sWS+1}]")
            a(f"v_add_u32 v{o0}, 0x10000, v{o0}")
            a(f"global_store_dwordx4 v{o0}, v[{pk+4}:{pk+7}], s[{sWS}:{sWS+1}]")
            pk2 = V.alloc(8, 2)
            for j in range(8): a(f"v_cvt_pk_bf16_f32 v{pk2+j}, v{vA[1]+2*j}, v{vA[1]+2*j+1}")
            a(f"global_store_dwordx4 v{o1}, v[{pk2}:{pk2+3}], s[{sWS}:{sWS+1}]")
            a(f"v_add_u32 v{o1}, 0x10000, v{o1}")
            a(f"global_store_dwordx4 v{o1}, v[{pk2+4}:{pk2+7}], s[{sWS}:{sWS+1}]")
            pk3 = V.alloc(8, 2)
            for j in range(8): a(f"v_cvt_pk_bf16_f32 v{pk3+j}, v{vA[2]+2*j}, v{vA[2]+2*j+1}")
            a(f"global_store_dwordx4 v{o2}, v[{pk3}:{pk3+3}], s[{sWS}:{sWS+1}]")
            a(f"global_store_dwordx4 v{o2}, v[{pk3+4}:{pk3+7}], s[{sWS}:{sWS+1}] offset:512")
            a("s_barrier")
            st.stamp()
            st.flush(sWS, sw8, 12)
            rt_stamp(a, rt, 0, 1)
            a("s_endpgm")
        else:
            RE, IM = vA
            U = [V.alloc(16, 2), V.alloc(16, 2)]
            ur, ui = U
            for j in range(8):
                r = 2*j
                a(f"v_pk_mul_f32 v[{ur+r}:{ur+r+1}], v[{RE+r}:{RE+r+1}], v[{vCr}:{vCr+1}] op_sel_hi:[1,0]")
                a(f"v_pk_mul_f32 v[{ui+r}:{ui+r+1}], v[{IM+r}:{IM+r+1}], v[{vCr}:{vCr+1}] op_sel_hi:[1,0]")
                a(f"v_pk_fma_f32 v[{ur+r}:{ur+r+1}], v[{IM+r}:{IM+r+1}], v[{vCr}:{vCr+1}], v[{ur+r}:{ur+r+1}] op_sel:[0,1,0] op_sel_hi:[1,1,1] neg_lo:[0,1,0] neg_hi:[0,1,0]")
                a(f"v_pk_fma_f32 v[{ui+r}:{ui+r+1}], v[{RE+r}:{RE+r+1}], v[{vCr}:{vCr+1}], v[{ui+r}:{ui+r+1}] op_sel:[0,1,0] op_sel_hi:[1,1,1]")
            for r in range(1, 16):
                a(f"v_fma_f32 v{ur+r}, v{vLr}, v{ur+r-1}, v{ur+r}")
                a(f"v_fma_f32 v{ui+r}, v{vLr}, v{ui+r-1}, v{ui+r}")
                a(f"v_fma_f32 v{ur+r}, -v{vLi}, v{ui+r-1}, v{ur+r}")
                a(f"v_fma_f32 v{ui+r}, v{vLi}, v{ur+r-1}, v{ui+r}")
            e = V.alloc(2, 2); ex = V.alloc(); exr = V.alloc()
            a(f"""
            v_mov_b32 v{e}, v{ur+15}
            v_mov_b32 v{e+1}, v{ui+15}
            s_and_b32 s{sT1}, s{sw8}, 3
            s_lshl_b32 s{sT0}, s{sT1}, 9
            s_add_u32 s{sT0}, s{sT0}, {4*STAGE}
            v_lshlrev_b32 v{ex}, 3, v1
            v_add_u32 v{ex}, s{sT0}, v{ex}          ; (2w+h)*256 + p*8 = w*512 + lane*8
            ds_write_b64 v{ex}, v[{e}:{e+1}]
            v_and_b32 v{exr}, 31, v1
            v_lshlrev_b32 v{exr}, 3, v{exr}
            v_add_u32 v{exr}, {4*STAGE}, v{exr}
            """)
            pk = V.alloc(16, 2)
            for j in range(8): a(f"v_cvt_pk_bf16_f32 v{pk+j}, v{ur+2*j}, v{ur+2*j+1}")
            for j in range(8): a(f"v_cvt_pk_bf16_f32 v{pk+8+j}, v{ui+2*j}, v{ui+2*j+1}")
            o0 = V.alloc()
            a(f"""
            s_lshl_b32 s{sT0}, s{sR}, 4
            s_add_u32 s{sT0}, s{sT0}, s{sc}
            s_lshl_b32 s{sT0}, s{sT0}, 2
            s_add_u32 s{sT0}, s{sT0}, s{sT1}       ; (R*16+c)*4+w
            s_mov_b32 s58, s{sT0}
            s_lshl_b32 s{sT0}, s{sT0}, 12
            s_add_u32 s{sT0}, s{sT0}, {WS_HL}
            v_lshlrev_b32 v{o0}, 4, v1
            v_add_u32 v{o0}, s{sT0}, v{o0}
            """)
            for j in range(4):
                a(f"global_store_dwordx4 v{o0}, v[{pk+4*j}:{pk+4*j+3}], s[{sWS}:{sWS+1}] offset:{1024*j}")
            a("s_waitcnt lgkmcnt(0)")
            a("s_barrier")
            E = V.alloc(14, 2)
            for s in range(7):
                a(f"ds_read_b64 v[{E+2*s}:{E+2*s+1}], v{exr} offset:{256*s}")
            cc = V.alloc(2, 2); tt = V.alloc(2, 2)
            a(f"v_mov_b32 v{cc}, 0")
            a(f"v_mov_b32 v{cc+1}, 0")
            a(f"s_lshl_b32 s{sT0}, s{sT1}, 1")
            a("s_waitcnt lgkmcnt(0)")
            def cstep(dst, src, add):
                a(f"v_pk_fma_f32 v[{tt}:{tt+1}], v[{src}:{src+1}], v[{vL16}:{vL16+1}], v[{add}:{add+1}] op_sel_hi:[0,1,1]")
                a(f"v_pk_fma_f32 v[{dst}:{dst+1}], v[{src}:{src+1}], v[{vL16}:{vL16+1}], v[{tt}:{tt+1}] op_sel:[1,1,0] op_sel_hi:[1,0,1] neg_lo:[0,1,0]")
            for s in range(6):
                a(f"s_cmp_gt_u32 s{sT0}, {s}")
                a("s_cbranch_scc0 L_k1_cdone")
                cstep(cc, cc, E + 2*s)
            a("L_k1_cdone:")
            e2 = V.alloc(2, 2); c1 = V.alloc(2, 2)
            a(f"""
            s_lshl_b32 s{sT0}, s{sT1}, 9
            v_add_u32 v{exr}, s{sT0}, v{exr}
            ds_read_b64 v[{e2}:{e2+1}], v{exr}
            s_waitcnt lgkmcnt(0)
            """)
            cstep(c1, cc, e2)
            a(f"""
            v_cmp_lt_u32 vcc, 31, v1
            s_nop 1
            v_cndmask_b32 v{cc}, v{cc}, v{c1}, vcc
            v_cndmask_b32 v{cc+1}, v{cc+1}, v{c1+1}, vcc
            s_lshl_b32 s{sT0}, s58, 9
            s_add_u32 s{sT0}, s{sT0}, {WS_CS}
            v_lshlrev_b32 v{o0}, 3, v1
            v_add_u32 v{o0}, s{sT0}, v{o0}
            global_store_dwordx2 v{o0}, v[{cc}:{cc+1}], s[{sWS}:{sWS+1}]
            """)
            st.stamp()
            st.flush(sWS, sw8, 12)
            a(f"""
            s_cmp_eq_u32 s{sT1}, 3
            s_cbranch_scc0 L_k1_end
            """)
            cstep(c1, cc, e)
            o1 = V.alloc()
            a(f"""
            v_and_b32 v{o1}, 31, v1
            v_lshlrev_b32 v{o1}, 4, v{o1}          ; p*16
            s_lshl_b32 s{sT0}, s{sc}, 12           ; c*4096
            s_lshr_b32 s{sT1}, s{sR}, 1
            s_lshl_b32 s{sT1}, s{sT1}, 9           ; (R>>1)*512
            s_add_u32 s{sT0}, s{sT0}, s{sT1}
            s_and_b32 s{sT1}, s{sR}, 1
            s_lshl_b32 s{sT1}, s{sT1}, 3           ; (R&1)*8
            s_add_u32 s{sT0}, s{sT0}, s{sT1}
            s_add_u32 s{sT0}, s{sT0}, {WS_EP}
            v_add_u32 v{o1}, s{sT0}, v{o1}
            v_cmp_lt_u32 vcc, 31, v1
            s_and_saveexec_b64 s[56:57], vcc
            global_store_dwordx2 v{o1}, v[{c1}:{c1+1}], s[{sWS}:{sWS+1}]
            """)
        V.release(m0)
    a(f"{END}:")
    a("s_endpgm")
    return name, V.hi, L1_LDS
```

```python
from asmlib import *
from k1 import *

L2_LDS = 131072 + 16384 + 64
FLAG = 131072 + 16384
PRIO = {0: 3, 8: 2, 13: 1, 15: 0}

def k2(a, prio=None, stamps=False, rt=False, prefetch=True, noside=False, pad=0, U=4, variant="B", sideprio=2):
    name = "k2_kernel"
    if prio is None: prio = PRIO
    NIT = 64 // U
    a(kernel_header(name))
    END = "L_k2_end"
    sWS = 4
    sw8, sxcd, si, shead, sqt, sR, sc = 6, 7, 8, 9, 10, 11, 12
    sKV = 16
    sT0, sT1, sIT, sNEXT, sFB, sM0, sSO = 20, 21, 22, 23, 24, 25, 26
    sMASK = 28
    a(f"""
    s_cmp_ge_u32 s2, 256
    s_cbranch_scc1 {END}
    s_load_dwordx2 s[{sWS}:{sWS+1}], s[0:1], 120
    v_lshrrev_b32 v2, 6, v0
    v_and_b32 v1, 63, v0
    s_and_b32 s{sxcd}, s2, 7
    v_readfirstlane_b32 s{sw8}, v2
    s_lshr_b32 s{si}, s2, 3
    s_and_b32 s{shead}, s{si}, 3
    s_lshl_b32 s{sT0}, s{sxcd}, 2
    s_add_u32 s{shead}, s{shead}, s{sT0}         ; head
    """)
    st = Stamps(a, stamps, 1)
    st.stamp()
    rt_stamp(a, rt, 1, 0)
    V = Regs(3, 164, "k2 vgpr")
    vL16o = V.alloc()
    t0, t1, t2, t3 = [V.alloc() for _ in range(4)]
    a(f"""
    v_lshlrev_b32 v{vL16o}, 4, v1
    s_cmp_ge_u32 s{sw8}, 8
    s_cbranch_scc1 L_k2_loader
    """)
    mA = V.mark()
    vQ = V.alloc(4, 4)
    vS = [V.alloc(16, 4), V.alloc(16, 4)]
    vO = V.alloc(16, 4); vNM = V.alloc(16, 4)
    vK = [V.alloc(4, 4), V.alloc(4, 4)]
    vV = [V.alloc(8, 4), V.alloc(8, 4)]
    vIdx, vKa, vVa, vFl = V.alloc(), V.alloc(), V.alloc(), V.alloc()
    a(f"""
    s_lshr_b32 s{sqt}, s{si}, 2
    s_lshl_b32 s{sqt}, s{sqt}, 3
    s_add_u32 s{sqt}, s{sqt}, s{sw8}             ; q tile
    s_lshl_b32 s{sT0}, s{shead}, 16
    s_lshl_b32 s{sT1}, s{sqt}, 10
    s_add_u32 s{sT1}, s{sT1}, s{sT0}
    v_add_u32 v{t0}, s{sT1}, v{vL16o}
    s_waitcnt lgkmcnt(0)
    global_load_dwordx4 {vr(vQ,4)}, v{t0}, s[{sWS}:{sWS+1}]
    v_mov_b32 v{vIdx}, 0xdddddddd
    v_mov_b32 v{vFl}, {FLAG}
    s_mov_b32 s{sMASK}, 0x0000ffff
    s_mov_b32 s{sMASK+1}, 0x0000ffff
    s_mov_b32 s{sFB}, 0
    """)
    for r in range(16): a(f"v_mov_b32 v{vNM+r}, 0")
    for b in range(2):
        for r in range(8): a(f"v_mov_b32 v{vV[b]+r}, 0x3f803f80")
    st.stamp()
    a(f"""
    s_waitcnt vmcnt(0)
    s_barrier
    """)
    st.stamp()
    a(f"""
L_k2_restart:
    v_mov_b32 v{vKa}, v{vL16o}
    v_and_b32 v{t0}, 15, v1
    v_lshlrev_b32 v{t0}, 4, v{t0}
    v_lshrrev_b32 v{t1}, 5, v1
    v_lshl_add_u32 v{t0}, v{t1}, 8, v{t0}
    v_add_u32 v{vVa}, 65536, v{t0}
    """)
    for r in range(16): a(f"v_mov_b32 v{vO+r}, 0")
    ev_f1 = (8 - 2 - (U - 1) + U - 1) // U if False else max(1, (8 - U - 1) // U + 0)
    ev_f1 = next(it for it in range(NIT) if U*it + U + 1 >= 8)
    ev_f2 = next(it for it in range(NIT) if U*it + U + 1 >= 16)
    evs = {}
    for k, p in prio.items():
        if k > 0: evs.setdefault(k * 4 // U, {})["prio"] = p
    f1 = ev_f1; f2 = ev_f2
    assert f1 >= 1 or U >= 7
    if f1 >= 1: evs.setdefault(f1, {})["flag"] = 0
    evs.setdefault(f2, {})["flag"] = 1
    events = sorted(evs) + [NIT]
    a(f"""
    ds_read_b128 {vr(vK[1],4)}, v{vKa}
    ds_read_b128 {vr(vK[0],4)}, v{vKa} offset:1024
    s_mov_b64 exec, s[{sMASK}:{sMASK+1}]
    ds_read_b128 v[{vV[0]}:{vV[0]+3}], v{vVa}
    ds_read_b128 v[{vV[0]+4}:{vV[0]+7}], v{vVa} offset:512
    s_mov_b64 exec, -1
    s_waitcnt lgkmcnt(3)
    v_mfma_f32_32x32x16_bf16 {vr(vS[0],16)}, {vr(vK[1],4)}, {vr(vQ,4)}, {vr(vNM,16)}
    s_mov_b32 s{sIT}, 0
    s_mov_b32 s{sNEXT}, {events[0]}
    s_setprio {prio.get(0, 0)}
    s_nop 7
    s_branch L_k2_loop
    """)
    a(".p2align 6")
    for _ in range(pad): a("s_nop 0")
    a("L_k2_loop:")
    for u in range(U):
        cur, nxt = u & 1, 1 - (u & 1)
        S = vS[cur]
        ex = lambda i: f"v_exp_f32 v{S+i}, v{S+i}"
        wait = "s_waitcnt lgkmcnt(0)"
        mf = f"v_mfma_f32_32x32x16_bf16 {vr(vS[nxt],16)}, {vr(vK[cur],4)}, {vr(vQ,4)}, {vr(vNM,16)}"
        rd = [f"ds_read_b128 {vr(vK[nxt],4)}, v{vKa} offset:{1024*(u+2)}",
              f"s_mov_b64 exec, s[{sMASK}:{sMASK+1}]",
              f"ds_read_b128 v[{vV[nxt]}:{vV[nxt]+3}], v{vVa} offset:{1024*(u+1)}",
              f"ds_read_b128 v[{vV[nxt]+4}:{vV[nxt]+7}], v{vVa} offset:{1024*(u+1)+512}",
              "s_mov_b64 exec, -1"]
        sm0 = f"v_smfmac_f32_32x32x32_bf16 {vr(vO,16)}, v[{vV[cur]}:{vV[cur]+3}], v[{S}:{S+7}], v{vIdx}"
        sm1 = f"v_smfmac_f32_32x32x32_bf16 {vr(vO,16)}, v[{vV[cur]+4}:{vV[cur]+7}], v[{S+8}:{S+15}], v{vIdx}"
        gap = [f"v_add_u32 v{vKa}, {1024*U}, v{vKa}", f"v_add_u32 v{vVa}, {1024*U}, v{vVa}"] if u == U - 1 else ["s_nop 1"]
        if variant == "A":
            seq = [wait, mf] + rd + [ex(i) for i in range(10)] + [sm0] + [ex(i) for i in range(10, 16)] + gap + [sm1]
        elif variant == "B":
            seq = [wait, mf, ex(0), ex(1), rd[0], ex(2), ex(3), ex(4), ex(5), rd[1], rd[2], rd[3], rd[4], ex(6), ex(7), ex(8), ex(9), sm0] + [ex(i) for i in range(10, 16)] + gap + [sm1]
        for l in seq: a(l)
    a(f"""
    s_add_u32 s{sIT}, s{sIT}, 1
    s_cmp_lt_u32 s{sIT}, s{sNEXT}
    s_cbranch_scc1 L_k2_loop
    """)
    for idx, ev in enumerate(events[:-1]):
        nxt_ev = events[idx+1]
        lab = f"L_k2_ev{ev}_skip"
        a(f"s_cmp_eq_u32 s{sIT}, {ev}")
        a(f"s_cbranch_scc0 {lab}")
        a(f"s_mov_b32 s{sNEXT}, {nxt_ev}")
        if stamps == 1: st.stamp()
        if "prio" in evs[ev]: a(f"s_setprio {evs[ev]['prio']}")
        if "flag" in evs[ev]:
            a(f"""
            s_cmp_lg_u32 s{sFB}, 0
            s_cbranch_scc1 L_k2_loop
L_k2_fl{ev}:
            ds_read_b32 v{t0}, v{vFl} offset:{4*evs[ev]['flag']}
            s_waitcnt lgkmcnt(0)
            v_readfirstlane_b32 s{sT0}, v{t0}
            s_nop 3
            s_cmp_ge_u32 s{sT0}, 4
            s_cbranch_scc1 L_k2_loop
            s_sleep 1
            s_branch L_k2_fl{ev}
            """)
        else:
            a("s_branch L_k2_loop")
        a(f"{lab}:")
    st.stamp()
    mk = V.mark()
    e0, e1, e2 = V.alloc(), V.alloc(), V.alloc()
    pk = V.alloc(4, 2)
    a(f"""
    s_setprio 0
    s_nop 7
    s_nop 7
    v_add_f32 v{e0}, |v{vO}|, |v{vO+1}|
    v_add_f32 v{e1}, |v{vO+2}|, |v{vO+3}|
    v_add_f32 v{e0}, v{e0}, |v{vO+4}|
    v_add_f32 v{e1}, v{e1}, |v{vO+5}|
    v_add_f32 v{e0}, v{e0}, |v{vO+6}|
    v_add_f32 v{e1}, v{e1}, |v{vO+7}|
    v_add_f32 v{e0}, v{e0}, v{e1}
    v_cmp_ge_f32 vcc, {f2u(2.0**120)}, v{e0}
    s_mov_b32 s{sT0}, {f2u(2.0**-60)}
    s_mov_b32 s{sT1}, {f2u(2.0**60)}
    v_cmp_le_f32 s[32:33], s{sT0}, v{vO+8}
    v_cmp_ge_f32 s[34:35], s{sT1}, v{vO+8}
    s_nop 1
    s_and_b64 vcc, vcc, s[32:33]
    s_and_b64 vcc, vcc, s[34:35]
    s_cmp_lg_u32 s{sFB}, 0
    s_cbranch_scc1 L_k2_fin
    s_cmp_eq_u64 vcc, exec
    s_cbranch_scc0 L_k2_slow
L_k2_fin:
    v_rcp_f32 v{e0}, v{vO+8}
    s_mul_i32 s{sT0}, s{sqt}, 96
    s_add_u32 s{sT0}, s{sT0}, s{shead}
    s_lshl_b32 s{sT0}, s{sT0}, 10
    s_add_u32 s{sT0}, s{sT0}, {WS_AF}
    v_add_u32 v{e1}, s{sT0}, v{vL16o}
    """)
    for r in range(8): a(f"v_mul_f32 v{vO+r}, v{vO+r}, v{e0}")
    for j in range(4): a(f"v_cvt_pk_bf16_f32 v{pk+j}, v{vO+2*j}, v{vO+2*j+1}")
    a(f"global_store_dwordx4 v{e1}, v[{pk}:{pk+3}], s[{sWS}:{sWS+1}]")
    st.stamp()
    st.flush(sWS, sw8, 12)
    rt_stamp(a, rt, 1, 1)
    a("s_endpgm")
    a(f"""
L_k2_slow:
    s_mov_b32 s{sFB}, 1
    v_mov_b32 v{e0}, 0xff800000
    v_mov_b32 v{vKa}, v{vL16o}
    s_mov_b32 s{sIT}, 64
L_k2_mx:
    ds_read_b128 {vr(vK[0],4)}, v{vKa}
    v_add_u32 v{vKa}, 1024, v{vKa}
    s_waitcnt lgkmcnt(0)
    v_mfma_f32_32x32x16_bf16 {vr(vS[0],16)}, {vr(vK[0],4)}, {vr(vQ,4)}, 0
    s_nop 7
    s_nop 7
    """)
    for j in range(8): a(f"v_max3_f32 v{e0}, v{vS[0]+2*j}, v{vS[0]+2*j+1}, v{e0}")
    a(f"""
    s_sub_u32 s{sIT}, s{sIT}, 1
    s_cmp_lg_u32 s{sIT}, 0
    s_cbranch_scc1 L_k2_mx
    v_mov_b32 v{e1}, v{e0}
    s_nop 1
    v_permlane32_swap_b32 v{e0}, v{e1}
    s_nop 1
    v_max_f32 v{e0}, v{e0}, v{e1}
    """)
    for r in range(16): a(f"v_sub_f32 v{vNM+r}, 0, v{e0}")
    a("s_branch L_k2_restart")
    V.release(mA)
    a("L_k2_loader:")
    sJ = 13
    a(f"""
    s_load_dwordx2 s[36:37], s[0:1], 0
    s_load_dwordx2 s[38:39], s[0:1], 16
    s_load_dwordx4 s[40:43], s[0:1], 64
    s_sub_u32 s{sJ}, s{sw8}, 8
    s_lshl_b32 s{sM0}, s{sJ}, 10
    s_lshl_b32 s{sT0}, s{shead}, 16
    s_add_u32 s{sSO}, s{sT0}, s{sM0}            ; head*65536 + j*1024
    v_mov_b32 v{t0}, {FLAG}
    v_mov_b32 v{t2}, 0
    v_mov_b32 v{t3}, 0
    s_waitcnt lgkmcnt(0)
    s_add_u32 s{sKV}, s{sWS}, {WS_KF}
    s_addc_u32 s{sKV+1}, s{sWS+1}, 0
    s_and_b32 s{sKV+1}, s{sKV+1}, 0xffff
    s_mov_b32 s{sKV+2}, 0x400000
    s_mov_b32 s{sKV+3}, 0x20000
    """)
    def dma2():
        a(f"s_mov_b32 m0, s{sM0}")
        a(f"s_add_u32 s{sT0}, s{sSO}, 0x200000")
        a(f"buffer_load_dwordx4 v{vL16o}, s[{sKV}:{sKV+3}], s{sSO} offen lds")
        a(f"s_add_u32 m0, s{sM0}, 65536")
        a(f"s_add_u32 s{sM0}, s{sM0}, 4096")
        a(f"buffer_load_dwordx4 v{vL16o}, s[{sKV}:{sKV+3}], s{sT0} offen lds")
        a(f"s_add_u32 s{sSO}, s{sSO}, 4096")
    def signal(k):
        a(f"""
        s_mov_b64 exec, 1
        ds_add_u32 v{t0}, v{t1} offset:{4*k}
        s_mov_b64 exec, -1
        """)
    for _ in range(4): dma2()
    a(f"""
    ds_write_b64 v{t0}, v[{t2}:{t3}]
    v_mov_b32 v{t1}, 1
    s_waitcnt vmcnt(4) lgkmcnt(0)
    s_barrier
    """)
    for _ in range(2): dma2()
    a("s_waitcnt vmcnt(4)")
    signal(0)
    a(f"s_mov_b32 s{sIT}, 10")
    a("L_k2_dmaloop:")
    dma2()
    a(f"""
    s_sub_u32 s{sIT}, s{sIT}, 1
    s_cmp_lg_u32 s{sIT}, 0
    s_cbranch_scc1 L_k2_dmaloop
    s_waitcnt vmcnt(0)
    """)
    signal(1)
    if stamps: st.n = 1; st.stamp()
    if sideprio: a(f"s_setprio {sideprio}")
    vPar = V.alloc(4, 2); vL128 = V.alloc(2, 2); vEP = V.alloc(32, 4); vCS = V.alloc(2, 2); vHL = V.alloc(16, 4)
    if not noside:
        a(f"""
        s_lshr_b32 s{sR}, s{si}, 4
        s_lshl_b32 s{sT0}, s{sxcd}, 1
        s_add_u32 s{sR}, s{sR}, s{sT0}               ; R'
        s_and_b32 s{sc}, s{si}, 15                   ; c'
        v_and_b32 v{t0}, 31, v1
        s_lshl_b32 s{sT0}, s{sc}, 5
        v_add_u32 v{t1}, s{sT0}, v{t0}
        v_lshlrev_b32 v{t1}, 5, v{t1}
        v_add_u32 v{t1}, {WS_PAR}, v{t1}
        global_load_dwordx4 {vr(vPar,4)}, v{t1}, s[{sWS}:{sWS+1}]
        global_load_dwordx2 {vr(vL128,2)}, v{t1}, s[{sWS}:{sWS+1}] offset:16
        s_lshl_b32 s{sT0}, s{sR}, 4
        s_add_u32 s{sT0}, s{sT0}, s{sc}
        s_lshl_b32 s{sT0}, s{sT0}, 2
        s_add_u32 s{sT0}, s{sT0}, s{sJ}
        s_lshl_b32 s{sT1}, s{sT0}, 9
        s_add_u32 s{sT1}, s{sT1}, {WS_CS}
        v_lshlrev_b32 v{t1}, 3, v1
        v_add_u32 v{t1}, s{sT1}, v{t1}
        global_load_dwordx2 {vr(vCS,2)}, v{t1}, s[{sWS}:{sWS+1}]
        s_lshl_b32 s{sT1}, s{sT0}, 12
        s_add_u32 s{sT1}, s{sT1}, {WS_HL}
        v_add_u32 v{t1}, s{sT1}, v{vL16o}
        """)
        for j in range(4):
            a(f"global_load_dwordx4 v[{vHL+4*j}:{vHL+4*j+3}], v{t1}, s[{sWS}:{sWS+1}] offset:{1024*j}")
        a(f"""
        v_lshlrev_b32 v{t1}, 4, v{t0}
        s_lshl_b32 s{sT0}, s{sc}, 12
        s_add_u32 s{sT0}, s{sT0}, {WS_EP}
        v_add_u32 v{t1}, s{sT0}, v{t1}
        """)
        for j in range(8):
            a(f"s_cmp_gt_u32 s{sR}, {2*j}")
            a("s_cbranch_scc0 L_k2_epd")
            a(f"global_load_dwordx4 v[{vEP+4*j}:{vEP+4*j+3}], v{t1}, s[{sWS}:{sWS+1}] offset:{512*j}")
        a("L_k2_epd:")
        a("s_waitcnt vmcnt(0)")
        if stamps: st.stamp()
        vT = V.alloc(2, 2); tt = V.alloc(2, 2); t1p = V.alloc(2, 2)
        Lam, L16 = vPar, vPar + 2
        def cfma(dst, src, L, add):
            a(f"v_pk_fma_f32 v[{tt}:{tt+1}], v[{src}:{src+1}], v[{L}:{L+1}], v[{add}:{add+1}] op_sel_hi:[0,1,1]")
            a(f"v_pk_fma_f32 v[{dst}:{dst+1}], v[{src}:{src+1}], v[{L}:{L+1}], v[{tt}:{tt+1}] op_sel:[1,1,0] op_sel_hi:[1,0,1] neg_lo:[0,1,0]")
        def cmul(dst, src, L):
            a(f"v_pk_mul_f32 v[{tt}:{tt+1}], v[{src}:{src+1}], v[{L}:{L+1}] op_sel_hi:[0,1]")
            a(f"v_pk_fma_f32 v[{dst}:{dst+1}], v[{src}:{src+1}], v[{L}:{L+1}], v[{tt}:{tt+1}] op_sel:[1,1,0] op_sel_hi:[1,0,1] neg_lo:[0,1,0]")
        a(f"v_mov_b32 v{vT}, 0")
        a(f"v_mov_b32 v{vT+1}, 0")
        for j in range(15):
            a(f"s_cmp_gt_u32 s{sR}, {j}")
            a("s_cbranch_scc0 L_k2_sdone")
            cfma(vT, vT, vL128, vEP + 2*j)
        a(f"""
L_k2_sdone:
        s_lshl_b32 s{sT1}, s{sJ}, 1
L_k2_pw:
        s_cmp_eq_u32 s{sT1}, 0
        s_cbranch_scc1 L_k2_pwd
        """)
        cmul(vT, vT, L16)
        a(f"""
        s_sub_u32 s{sT1}, s{sT1}, 1
        s_branch L_k2_pw
L_k2_pwd:
        """)
        cmul(t1p, vT, L16)
        a(f"""
        v_cmp_lt_u32 vcc, 31, v1
        s_nop 1
        v_cndmask_b32 v{vT}, v{vT}, v{t1p}, vcc
        v_cndmask_b32 v{vT+1}, v{vT+1}, v{t1p+1}, vcc
        v_pk_add_f32 v[{vT}:{vT+1}], v[{vT}:{vT+1}], v[{vCS}:{vCS+1}]
        """)
        sel = V.alloc(2)
        hre = vEP; him = vEP + 16
        out = V.alloc(16, 4)
        a(f"v_mov_b32 v{sel}, 0x00003f80")
        a(f"v_mov_b32 v{sel+1}, 0x3f800000")
        for r in range(16):
            cmul(vT, vT, Lam)
            a(f"v_dot2_f32_bf16 v{hre+r}, v{vHL + r//2}, v{sel + (r&1)}, v{vT}")
            a(f"v_dot2_f32_bf16 v{him+r}, v{vHL + 8 + r//2}, v{sel + (r&1)}, v{vT+1}")
        a("s_nop 2")
        for j in range(8): a(f"v_cvt_pk_bf16_f32 v{out+j}, v{hre+2*j}, v{hre+2*j+1}")
        for j in range(8): a(f"v_cvt_pk_bf16_f32 v{out+8+j}, v{him+2*j}, v{him+2*j+1}")
        wa, ra = V.alloc(), V.alloc()
        a(f"""
        s_lshl_b32 s{sT1}, s{sJ}, 12
        s_add_u32 s{sT1}, s{sT1}, 131072
        v_and_b32 v{t0}, 31, v1
        v_lshlrev_b32 v{t0}, 6, v{t0}
        v_lshrrev_b32 v{t1}, 5, v1
        v_lshl_add_u32 v{t0}, v{t1}, 5, v{t0}
        v_add_u32 v{wa}, s{sT1}, v{t0}
        ds_write_b128 v{wa}, v[{out}:{out+3}]
        ds_write_b128 v{wa}, v[{out+4}:{out+7}] offset:16
        ds_write_b128 v{wa}, v[{out+8}:{out+11}] offset:2048
        ds_write_b128 v{wa}, v[{out+12}:{out+15}] offset:2064
        v_bfe_u32 v{t0}, v1, 2, 2
        v_lshrrev_b32 v{t1}, 5, v1
        v_lshl_add_u32 v{t0}, v{t1}, 3, v{t0}
        v_lshlrev_b32 v{t0}, 6, v{t0}
        v_and_b32 v{t1}, 3, v1
        v_bfe_u32 v{t2}, v1, 4, 1
        v_lshl_add_u32 v{t1}, v{t2}, 2, v{t1}
        v_lshl_add_u32 v{t0}, v{t1}, 3, v{t0}
        v_add_u32 v{ra}, s{sT1}, v{t0}
        s_waitcnt lgkmcnt(0)
        """)
        fr = vHL
        for part in range(2):
            for ks in range(2):
                f = 2*part + ks
                for u in range(2):
                    a(f"ds_read_b64_tr_b16 v[{fr+4*f+2*u}:{fr+4*f+2*u+1}], v{ra} offset:{2048*part + 1024*ks + 256*u}")
        a(f"""
        s_lshl_b32 s{sT1}, s{sR}, 2
        s_add_u32 s{sT1}, s{sT1}, s{sJ}           ; tt32 = 4R+w
        s_mul_i32 s{sT1}, s{sT1}, 96
        s_lshl_b32 s{sT0}, s{sc}, 1
        s_add_u32 s{sT1}, s{sT1}, s{sT0}
        s_add_u32 s{sT1}, s{sT1}, 32
        s_lshl_b32 s{sT1}, s{sT1}, 10
        s_add_u32 s{sT1}, s{sT1}, {WS_AF}
        v_add_u32 v{t0}, s{sT1}, v{vL16o}
        v_add_u32 v{t1}, 32768, v{t0}
        s_waitcnt lgkmcnt(0)
        global_store_dwordx4 v{t0}, v[{fr}:{fr+3}], s[{sWS}:{sWS+1}]
        global_store_dwordx4 v{t0}, v[{fr+4}:{fr+7}], s[{sWS}:{sWS+1}] offset:1024
        global_store_dwordx4 v{t1}, v[{fr+8}:{fr+11}], s[{sWS}:{sWS+1}]
        global_store_dwordx4 v{t1}, v[{fr+12}:{fr+15}], s[{sWS}:{sWS+1}] offset:1024
        """)
        if stamps: st.stamp()
    if prefetch:
        vD = V.alloc(2)
        def pfw(add, dst):
            a(f"""
            s_mul_i32 s{sT0}, s{si}, 6
            s_add_u32 s{sT0}, s{sT0}, s{sJ}
            s_add_u32 s{sT0}, s{sT0}, {add}
            s_lshr_b32 s{sT1}, s{sT0}, 6
            s_and_b32 s{sT0}, s{sT0}, 63
            s_lshl_b32 s{sT0}, s{sT0}, 13
            v_lshlrev_b32 v{t2}, 7, v1
            v_add_u32 v{t2}, s{sT0}, v{t2}
            s_cmp_eq_u32 s{sT1}, 0
            s_cselect_b32 s44, s38, s40
            s_cselect_b32 s45, s39, s41
            s_cmp_eq_u32 s{sT1}, 2
            s_cselect_b32 s44, s42, s44
            s_cselect_b32 s45, s43, s45
            global_load_dword v{dst}, v{t2}, s[44:45]
            """)
        pfw(0, vD)
        a(f"s_cmp_lt_u32 s{sJ}, 2")
        a("s_cbranch_scc0 L_k2_pfx")
        pfw(4, vD + 1)
        a("s_branch L_k2_pfd")
        a(f"""
L_k2_pfx:
        s_cmp_eq_u32 s{sJ}, 2
        s_cbranch_scc0 L_k2_pfd
        s_lshl_b32 s{sT0}, s{sxcd}, 18
        s_lshl_b32 s{sT1}, s{si}, 13
        s_add_u32 s{sT0}, s{sT0}, s{sT1}
        v_lshlrev_b32 v{t2}, 7, v1
        v_add_u32 v{t2}, s{sT0}, v{t2}
        global_load_dword v{vD+1}, v{t2}, s[36:37]
L_k2_pfd:
        """)
    if stamps:
        st.n = 9; st.stamp()
        st.flush(sWS, sw8, 12)
    a(f"{END}:")
    a("s_endpgm")
    return name, V.hi, L2_LDS
```

```python
from asmlib import *
from k1 import *

K3_STG = 49152
K3_NS = 3
L3_LDS = K3_NS * K3_STG

def k3(a, stamps=False, rt=False, stagger=True, nload=4, kahead=5):
    name = "k3_kernel"
    a(kernel_header(name))
    END = "L_k3_end"
    sWS = 4
    sw, sxcd, si, stt2, sct, stsub, skg = 6, 7, 8, 9, 10, 11, 12
    sT0, sT1, sSLOT, sCH, sIT, sRD, sDELTA = 20, 21, 22, 23, 13, 14, 15
    sWo, sCr, sCi, sAF = 40, 44, 48, 52
    a(f"""
    s_cmp_ge_u32 s2, 256
    s_cbranch_scc1 {END}
    s_load_dwordx2 s[{sWS}:{sWS+1}], s[0:1], 120
    s_load_dwordx2 s[24:25], s[0:1], 0
    s_load_dwordx2 s[26:27], s[0:1], 16
    s_load_dwordx4 s[28:31], s[0:1], 64
    s_load_dwordx2 s[32:33], s[0:1], 88
    s_load_dwordx2 s[34:35], s[0:1], 104
    v_lshrrev_b32 v2, 6, v0
    v_and_b32 v1, 63, v0
    s_and_b32 s{sxcd}, s2, 7
    v_readfirstlane_b32 s{sw}, v2
    s_lshr_b32 s{si}, s2, 3
    s_and_b32 s{stt2}, s{si}, 3
    s_lshl_b32 s{sT0}, s{sxcd}, 2
    s_add_u32 s{stt2}, s{stt2}, s{sT0}
    s_lshr_b32 s{sct}, s{si}, 2
    """)
    st = Stamps(a, stamps, 2)
    st.stamp()
    rt_stamp(a, rt, 2, 0)
    V = Regs(3, 160, "k3 vgpr")
    vL16o = V.alloc()
    t0, t1, t2, t3 = [V.alloc() for _ in range(4)]
    a(f"v_lshlrev_b32 v{vL16o}, 4, v1")
    a(f"s_cmp_lt_u32 s{sw}, 6")
    a("s_cbranch_scc1 L_k3_compute")
    assert nload == 4
    mL = V.mark()
    vDo, vDe, vDodd = V.alloc(), V.alloc(), V.alloc()
    sL = 16
    sSOw, sSOc, sSOa0, sSOa1, sM0w, sM0a = 17, 18, 19, 36, 37, 38
    a(f"""
    s_sub_u32 s{sL}, s{sw}, 6
    v_lshrrev_b32 v{t0}, 3, v1
    v_and_b32 v{t1}, 7, v1                      ; chunk'
    v_bfe_u32 v{t2}, v{t0}, 1, 1
    v_lshlrev_b32 v{t2}, 2, v{t2}
    v_xor_b32 v{t2}, v{t2}, v{t1}
    v_lshlrev_b32 v{t2}, 4, v{t2}
    v_lshl_add_u32 v{vDo}, v{t0}, 10, v{t2}
    v_lshrrev_b32 v{t2}, 1, v{t0}
    v_xor_b32 v{t3}, v{t2}, v{t1}
    v_lshlrev_b32 v{t3}, 4, v{t3}
    v_lshl_add_u32 v{vDe}, v{t0}, 10, v{t3}
    v_xor_b32 v{vDodd}, 64, v{vDe}
    s_lshl_b32 s{sT0}, s{sL}, 14                ; rows q'=2l -> 2l*8192
    s_lshl_b32 s{sSOw}, s{sct}, 7
    s_add_u32 s{sSOw}, s{sSOw}, s{sT0}
    s_lshl_b32 s{sSOc}, s{sct}, 16
    s_add_u32 s{sSOc}, s{sSOc}, s{sT0}          ; C: ct*65536 + 2l*8192
    s_lshl_b32 s{sM0w}, s{sL}, 11               ; LDS: 2l*1024
    s_mul_i32 s{sSOa0}, s{stt2}, {2*96*1024}
    s_lshl_b32 s{sT0}, s{sL}, 10
    s_add_u32 s{sSOa0}, s{sSOa0}, s{sT0}
    s_add_u32 s{sSOa1}, s{sSOa0}, {96*1024}
    s_add_u32 s{sM0a}, s{sT0}, 24576
    s_mov_b32 s{sSLOT}, 0
    """)
    if stagger:
        a(f"s_lshl_b32 s{sT0}, s{stt2}, 1")
        a(f"s_add_u32 s{sCH}, s{sct}, s{sT0}")
        a(f"s_and_b32 s{sCH}, s{sCH}, 7")
    else:
        a(f"s_mov_b32 s{sCH}, 0")
    a("s_waitcnt lgkmcnt(0)")
    srd(a, sWo, 26, 27, 0x80000)
    srd(a, sCr, 28, 29, 0x80000)
    srd(a, sCi, 30, 31, 0x80000)
    a(f"""
    s_add_u32 s{sAF}, s{sWS}, {WS_AF}
    s_addc_u32 s{sAF+1}, s{sWS+1}, 0
    s_and_b32 s{sAF+1}, s{sAF+1}, 0xffff
    s_mov_b32 s{sAF+2}, 0x600000
    s_mov_b32 s{sAF+3}, 0x20000
    """)
    n = 12
    k = kahead
    def issue_setup():
        a(f"""
        s_add_u32 s56, s{sSLOT}, s{sM0a}
        s_lshl_b32 s57, s{sCH}, 12
        s_add_u32 s58, s{sSOa0}, s57
        s_add_u32 s59, s{sSOa1}, s57
        s_add_u32 s60, s{sSLOT}, s{sM0w}
        s_lshl_b32 s61, s{sCH}, 16
        s_add_u32 s61, s61, s{sSOw}
        s_lshl_b32 s62, s{sCH}, 7
        s_add_u32 s62, s62, s{sSOc}
        s_add_u32 s{sCH}, s{sCH}, 1
        s_and_b32 s{sCH}, s{sCH}, 7
        s_add_u32 s{sSLOT}, s{sSLOT}, {K3_STG}
        s_cmp_eq_u32 s{sSLOT}, {K3_NS*K3_STG}
        s_cselect_b32 s{sSLOT}, 0, s{sSLOT}
        """)
    def issue_part(lo, hi):
        ins = []
        for kg, (srdn, so) in enumerate(((sWo, 61), (sCr, 62), (sCi, 62))):
            for q in range(2):
                vo = vDo if kg == 0 else (vDodd if q else vDe)
                ins.append([f"s_add_u32 m0, s60, {8192*kg + 1024*q}", f"s_add_u32 s{sT0}, s{so}, {8192*q}",
                            f"buffer_load_dwordx4 v{vo}, s[{srdn}:{srdn+3}], s{sT0} offen lds"])
            for ts, so2 in ((0, 58), (1, 59)):
                ins.append([f"s_add_u32 m0, s56, {(ts*3 + kg)*4096}", f"s_add_u32 s{sT0}, s{so2}, {kg*32*1024}",
                            f"buffer_load_dwordx4 v{vL16o}, s[{sAF}:{sAF+3}], s{sT0} offen lds"])
        for g in ins[lo:hi]:
            for l in g: a(l)
    issue_setup(); issue_part(0, n)
    issue_setup(); issue_part(0, k)
    a(f"s_waitcnt vmcnt({k})")
    a("s_barrier")
    a(f"s_mov_b32 s{sIT}, 1")
    a("L_k3_lloop:")
    issue_part(k, n)
    issue_setup(); issue_part(0, k)
    a(f"""
    s_waitcnt vmcnt({k})
    s_barrier
    s_add_u32 s{sIT}, s{sIT}, 1
    s_cmp_lt_u32 s{sIT}, 7
    s_cbranch_scc1 L_k3_lloop
    """)
    issue_part(k, n)
    a(f"""
    s_waitcnt vmcnt(0)
    s_barrier
    s_endpgm
    """)
    V.release(mL)
    a("L_k3_compute:")
    a(f"""
    s_and_b32 s{stsub}, s{sw}, 1
    s_lshr_b32 s{skg}, s{sw}, 1
    s_lshl_b32 s{sT0}, s{stt2}, 1
    s_add_u32 s36, s{sT0}, s{stsub}             ; tt32
    """)
    acc = [V.alloc(16, 2), V.alloc(16, 2)]
    vx = V.alloc(8, 2); vd = V.alloc(8, 2); vg = V.alloc(2, 2); vOut = V.alloc()
    pre = V.alloc(16, 2)
    a(f"""
    s_and_b32 s{sT1}, s{skg}, 1
    s_lshl_b32 s{sT1}, s{sT1}, 5
    s_lshl_b32 s{sT0}, s{sct}, 6
    s_add_u32 s38, s{sT0}, s{sT1}
    v_lshrrev_b32 v{t0}, 5, v1
    v_lshlrev_b32 v{t0}, 4, v{t0}
    v_add_u32 v{t0}, s38, v{t0}               ; n0
    v_and_b32 v{t1}, 31, v1
    s_lshl_b32 s{sT0}, s36, 5
    v_add_u32 v{t1}, s{sT0}, v{t1}            ; token
    v_lshlrev_b32 v{t2}, 1, v{t0}
    v_lshl_add_u32 v{t3}, v{t1}, 10, v{t2}
    s_waitcnt lgkmcnt(0)
    global_load_dwordx4 v[{vx}:{vx+3}], v{t3}, s[24:25]
    global_load_dwordx4 v[{vx+4}:{vx+7}], v{t3}, s[24:25] offset:16
    global_load_dwordx4 v[{vd}:{vd+3}], v{t2}, s[32:33]
    global_load_dwordx4 v[{vd+4}:{vd+7}], v{t2}, s[32:33] offset:16
    v_lshlrev_b32 v{t2}, 3, v{t1}
    v_add_u32 v{t2}, {WS_G}, v{t2}
    global_load_dwordx2 v[{vg}:{vg+1}], v{t2}, s[{sWS}:{sWS+1}]
    v_lshlrev_b32 v{t0}, 2, v{t0}
    v_lshl_add_u32 v{vOut}, v{t1}, 11, v{t0}
    """)
    for ch in range(2):
        for r in range(16): a(f"v_mov_b32 v{acc[ch]+r}, 0")
    vR = V.alloc(4); vAa = V.alloc()
    fb = [[V.alloc(4, 2), V.alloc(4, 2)] for _ in range(2)]
    fa = [V.alloc(4, 2), V.alloc(4, 2)]
    a(f"""
    s_mul_i32 s{sT0}, s{stsub}, 3
    s_add_u32 s{sT0}, s{sT0}, s{skg}
    s_lshl_b32 s{sT0}, s{sT0}, 12
    s_add_u32 s{sT0}, s{sT0}, 24576
    v_add_u32 v{vAa}, s{sT0}, v{vL16o}
    """)
    def prexd():
        u0, u1, u2, u3 = t0, t1, t2, t3
        a("s_waitcnt vmcnt(0)")
        for j in range(8):
            a(f"""
            v_lshlrev_b32 v{u0}, 16, v{vx+j}
            v_and_b32 v{u1}, 0xffff0000, v{vx+j}
            v_lshlrev_b32 v{u2}, 16, v{vd+j}
            v_and_b32 v{u3}, 0xffff0000, v{vd+j}
            v_mul_f32 v{u0}, v{u0}, v{u2}
            v_mul_f32 v{u1}, v{u1}, v{u3}
            v_cvt_pk_bf16_f32 v{u0}, v{u0}, v{u1}
            v_and_b32 v{u1}, 0xffff0000, v{u0}
            v_lshlrev_b32 v{u0}, 16, v{u0}
            v_mul_f32 v{pre+2*j}, v{vg+1}, v{u0}
            v_mul_f32 v{pre+2*j+1}, v{vg+1}, v{u1}
            """)
        a(f"v_add_f32 v{vg+1}, v{vg+1}, v{vg+1}")
    def mainloop(role, L):
        def reads(s, b):
            a(f"ds_read_b128 v[{fa[b]}:{fa[b]+3}], v{vAa} offset:{1024*s}")
            for ch in range(2):
                if role == 0:
                    for u in range(2):
                        a(f"ds_read_b64_tr_b16 v[{fb[b][ch]+2*u}:{fb[b][ch]+2*u+1}], v{vR+ch} offset:{2048*s + 512*u}")
                else:
                    a(f"ds_read_b128 v[{fb[b][ch]}:{fb[b][ch]+3}], v{vR+s} offset:{4096*ch}")
        nrd = 5 if role == 0 else 3
        def mf(b):
            for ch in range(2):
                a(f"v_mfma_f32_32x32x16_bf16 {vr(acc[ch],16)}, {vr(fb[b][ch],4)}, v[{fa[b]}:{fa[b]+3}], {vr(acc[ch],16)}")
        prexd()
        st.n = 1; st.stamp()
        a(f"""
        s_mov_b32 s{sIT}, 0
        s_mov_b32 s{sRD}, 0
        s_mov_b32 s39, {-(K3_NS-1)*K3_STG & 0xffffffff:#x}
        s_barrier
        """)
        st.stamp()
        reads(0, 0)
        a(f"{L}_loop:")
        for s in range(3):
            b = s & 1
            reads(s + 1, 1 - b)
            a(f"s_waitcnt lgkmcnt({nrd})")
            mf(b)
        a(f"""
        s_add_u32 s{sRD}, s{sRD}, 1
        s_cmp_eq_u32 s{sRD}, {K3_NS}
        s_cselect_b32 s{sDELTA}, s39, {K3_STG}
        s_cselect_b32 s{sRD}, 0, s{sRD}
        v_add_u32 v{vAa}, s{sDELTA}, v{vAa}
        """)
        for s in range(2 if role == 0 else 4): a(f"v_add_u32 v{vR+s}, s{sDELTA}, v{vR+s}")
        a(f"""
        s_add_u32 s{sIT}, s{sIT}, 1
        s_cmp_lt_u32 s{sIT}, 8
        s_waitcnt lgkmcnt(0)
        s_cbranch_scc0 {L}_last
        s_barrier
        """)
        reads(0, 0)
        mf(1)
        a(f"s_branch {L}_loop")
        a(f"{L}_last:")
        mf(1)
    a(f"""
    s_cmp_eq_u32 s{skg}, 0
    s_cbranch_scc0 L_k3_crole
    v_bfe_u32 v{t0}, v1, 2, 2               ; r
    v_lshrrev_b32 v{t1}, 5, v1              ; hk
    v_lshl_add_u32 v{t1}, v{t1}, 3, v{t0}
    v_lshlrev_b32 v{t1}, 7, v{t1}
    v_lshrrev_b32 v{t0}, 1, v{t0}
    v_and_b32 v{t2}, 3, v1
    v_bfe_u32 v{t3}, v1, 4, 1
    v_lshl_add_u32 v{t2}, v{t3}, 2, v{t2}
    v_and_b32 v{t3}, 1, v{t2}
    v_lshlrev_b32 v{t3}, 2, v{t3}
    v_lshrrev_b32 v{t2}, 1, v{t2}
    v_add_u32 v{t2}, v{t2}, v{t3}
    v_lshl_add_u32 v{t1}, v{t2}, 3, v{t1}
    v_lshl_add_u32 v{vR}, v{t0}, 6, v{t1}
    v_xor_b32 v{t0}, 1, v{t0}
    v_lshl_add_u32 v{vR+1}, v{t0}, 6, v{t1}
    """)
    mainloop(0, "L_k3_a")
    a("s_branch L_k3_red")
    a("L_k3_crole:")
    a(f"""
    v_and_b32 v{t0}, 31, v1
    v_bfe_u32 v{t1}, v{t0}, 2, 1
    v_lshlrev_b32 v{t1}, 4, v{t1}
    v_bfe_u32 v{t2}, v{t0}, 3, 2
    v_lshl_add_u32 v{t1}, v{t2}, 2, v{t1}
    v_and_b32 v{t2}, 3, v{t0}
    v_add_u32 v{t1}, v{t1}, v{t2}           ; n_local
    v_bfe_u32 v{t2}, v{t1}, 1, 3
    v_lshlrev_b32 v{t1}, 7, v{t1}
    s_lshl_b32 s{sT0}, s{skg}, 13
    v_add_u32 v{t1}, s{sT0}, v{t1}
    v_lshrrev_b32 v{t0}, 5, v1
    """)
    for s in range(4):
        a(f"""
        v_or_b32 v{t3}, {2*s}, v{t0}
        v_xor_b32 v{t3}, v{t3}, v{t2}
        v_lshl_add_u32 v{vR+s}, v{t3}, 4, v{t1}
        """)
    mainloop(1, "L_k3_c")
    a("L_k3_red:")
    st.n = 3; st.stamp()
    XB = 2 * K3_STG
    a(f"""
    s_mul_i32 s{sT0}, s{stsub}, 24576
    s_lshl_b32 s{sT1}, s{skg}, 13
    s_add_u32 s{sT0}, s{sT0}, s{sT1}
    s_add_u32 s{sT0}, s{sT0}, {XB}
    v_add_u32 v{t0}, s{sT0}, v{vL16o}
    s_nop 7
    s_nop 4
    s_cmp_eq_u32 s{skg}, 0
    s_cbranch_scc1 L_k3_w1
    """)
    for q in range(4):
        a(f"ds_write_b128 v{t0}, v[{acc[0]+4*q}:{acc[0]+4*q+3}] offset:{1024*q}")
    a(f"""
    s_cmp_eq_u32 s{skg}, 1
    s_cbranch_scc1 L_k3_wd
L_k3_w1:
    """)
    for q in range(4):
        a(f"ds_write_b128 v{t0}, v[{acc[1]+4*q}:{acc[1]+4*q+3}] offset:{4096 + 1024*q}")
    a(f"""
L_k3_wd:
    s_waitcnt lgkmcnt(0)
    s_barrier
    s_cmp_eq_u32 s{skg}, 2
    s_cbranch_scc1 {END}
    """)
    P = V.alloc(16, 2); Q = V.alloc(16, 2)
    a(f"""
    s_mul_i32 s{sT0}, s{stsub}, 24576
    s_add_u32 s{sT0}, s{sT0}, {XB}
    v_add_u32 v{t0}, s{sT0}, v{vL16o}
    s_cmp_eq_u32 s{skg}, 0
    s_cbranch_scc0 L_k3_f1
    """)
    for q in range(4):
        a(f"ds_read_b128 v[{P+4*q}:{P+4*q+3}], v{t0} offset:{8192 + 1024*q}")
        a(f"ds_read_b128 v[{Q+4*q}:{Q+4*q+3}], v{t0} offset:{16384 + 1024*q}")
    for q in range(4):
        a(f"s_waitcnt lgkmcnt({6 - 2*q})")
        for r in range(4*q, 4*q+4):
            a(f"v_sub_f32 v{Q+r}, v{P+r}, v{Q+r}")
            a(f"v_fma_f32 v{P+r}, v{vg}, v{acc[0]+r}, v{pre+r}")
            a(f"v_fma_f32 v{P+r}, v{vg+1}, v{Q+r}, v{P+r}")
        a(f"global_store_dwordx4 v{vOut}, v[{P+4*q}:{P+4*q+3}], s[34:35] offset:{16*q}")
    a(f"s_branch L_k3_done")
    a("L_k3_f1:")
    for q in range(4):
        a(f"ds_read_b128 v[{P+4*q}:{P+4*q+3}], v{t0} offset:{4096 + 1024*q}")
        a(f"ds_read_b128 v[{Q+4*q}:{Q+4*q+3}], v{t0} offset:{16384 + 4096 + 1024*q}")
    for q in range(4):
        a(f"s_waitcnt lgkmcnt({6 - 2*q})")
        for r in range(4*q, 4*q+4):
            a(f"v_sub_f32 v{Q+r}, v{acc[1]+r}, v{Q+r}")
            a(f"v_fma_f32 v{P+r}, v{vg}, v{P+r}, v{pre+r}")
            a(f"v_fma_f32 v{P+r}, v{vg+1}, v{Q+r}, v{P+r}")
        a(f"global_store_dwordx4 v{vOut}, v[{P+4*q}:{P+4*q+3}], s[34:35] offset:{16*q}")
    a("L_k3_done:")
    st.stamp()
    st.flush(sWS, sw, 10)
    rt_stamp(a, rt, 2, 1)
    a(f"{END}:")
    a("s_endpgm")
    return name, V.hi, L3_LDS
```
